```python
import torch

def _softmax(x, axis=-1):
    return torch.softmax(x, dim=axis)
def _gelu(x):
    return torch.nn.functional.gelu(x, approximate="tanh")
def _silu(x):
    return torch.nn.functional.silu(x)
def _sigmoid(x):
    return torch.sigmoid(x)
def _layernorm(x, axis=-1, eps=1e-5):
    m = x.mean(dim=axis, keepdim=True)
    v = x.var(dim=axis, keepdim=True, unbiased=False)
    return (x - m) / torch.sqrt(v + eps)
def _scatter_add(tgt, idx, src, axis=0):
    return tgt.clone().index_add_(axis, idx, src)
def _segment_sum(src, seg, n):
    out = torch.zeros((n,) + src.shape[1:], dtype=src.dtype)
    return out.index_add_(0, seg, src)
def _pad(x, pw):
    flat = tuple(v for pair in reversed(pw) for v in pair)
    return torch.nn.functional.pad(x, flat)

kernel_name = 'recurrent_scan__sliding_block_cached__dense_activation_squared_relu__prompt'

def setup_inputs():

    _w = (lambda a: (lambda t: t.to(torch.bfloat16) if t.is_floating_point() else t)(torch.as_tensor(a)))
    def _A_setup():
        B, Sq, D = 1, 2048, 512
        Hq, Hkv, Sk, Dh = 32, 32, 2048, 128
        assert Hq % Hkv == 0, (Hq, Hkv)
        return {
            "x": _w((lambda *s: torch.randn(*s, dtype=torch.bfloat16) * 0.05)(B, Sq, D)),
            "k_cache": _w((lambda *s: torch.randn(*s, dtype=torch.bfloat16) * 0.8)(B, Hkv, Sk, Dh)),
            "v_cache": _w((lambda *s: torch.randn(*s, dtype=torch.bfloat16) * 0.2)(B, Hkv, Sk, Dh)),
            "wq": _w((lambda *s: torch.randn(*s, dtype=torch.bfloat16) * 0.8)(D, Hq * Dh) * (D ** -0.5)),
            "wo": _w((lambda *s: torch.randn(*s, dtype=torch.bfloat16) * 0.2)(Hq * Dh, D) * ((Hq * Dh) ** -0.5)),
        }
    _A_in = _A_setup()

    def _B_setup():
        B, S, D, F = 1, 2048, 512, 1376
        return {
            "x": _w((lambda *s: torch.randn(*s, dtype=torch.bfloat16) * 0.05)(B, S, D)),
            "w1": _w((lambda *s: torch.randn(*s, dtype=torch.bfloat16) * 0.1)(D, F)),
            "b1": _w((lambda *s: torch.randn(*s, dtype=torch.bfloat16) * 0.8)(F)),
            "w2": _w((lambda *s: torch.randn(*s, dtype=torch.bfloat16) * 0.1)(F, D)),
            "b2": _w((lambda *s: torch.randn(*s, dtype=torch.bfloat16) * 6.4)(D)),
        }
    _B_in = _B_setup()

    return {
        "A_x": _A_in["x"],
        "A_k_cache": _A_in["k_cache"],
        "A_v_cache": _A_in["v_cache"],
        "A_wq": _A_in["wq"],
        "A_wo": _A_in["wo"],
        "B_x": _B_in["x"],
        "B_w1": _B_in["w1"],
        "B_b1": _B_in["b1"],
        "B_w2": _B_in["w2"],
        "B_b2": _B_in["b2"],
    }

def reference(A_x, A_k_cache, A_v_cache, A_wq, A_wo, B_x, B_w1, B_b1, B_w2, B_b2):
    def _A_ref(x, k_cache, v_cache, wq, wo):
        B, Sq, D = x.shape
        Hq, Dh = 32, 128
        Hkv, Sk = k_cache.shape[1], k_cache.shape[2]
        W = min(4096, max(256, Sk // 4))
        rep = Hq // Hkv
        q = (lambda x, *d: x.permute(*d))((x @ wq).reshape(B, Sq, Hq, Dh), 0, 2, 1, 3)
        k = (lambda x, n, axis: torch.repeat_interleave(x, n, dim=axis))(k_cache[:, :, Sk - W:, :], rep, axis=1)
        v = (lambda x, n, axis: torch.repeat_interleave(x, n, dim=axis))(v_cache[:, :, Sk - W:, :], rep, axis=1)
        scores = torch.einsum("bhqd,bhkd->bhqk", q, k) * (Dh ** -0.5)
        p = _softmax(scores, axis=-1)
        o = torch.einsum("bhqk,bhkd->bhqd", p, v)
        return (lambda x, *d: x.permute(*d))(o, 0, 2, 1, 3).reshape(B, Sq, Hq * Dh) @ wo

    def _B_ref(x, w1, b1, w2, b2):
        h = torch.einsum("bsd,df->bsf", x, w1) + b1
        zero = torch.zeros_like(h)
        r = torch.where(h > zero, h, zero)
        h = r * r
        out = torch.einsum("bsf,fd->bsd", h, w2) + b2
        return out

    x = A_x
    xn = _layernorm(x, axis=-1)
    s = _A_ref(xn, A_k_cache, A_v_cache, A_wq, A_wo)
    g = _silu(_B_ref(xn, B_w1, B_b1, B_w2, B_b2))
    return x + s * g
```

```python
import re

TRANS = ("v_exp_f32", "v_log_f32", "v_rcp_f32", "v_rsq_f32", "v_sqrt_f32", "v_sin_f32", "v_cos_f32")

def regs_of(tok):
    tok = tok.strip()
    tok = tok.lstrip("-")
    m = re.match(r"^abs\((.*)\)$", tok) or re.match(r"^\|(.*)\|$", tok)
    if m: tok = m.group(1)
    m = re.match(r"^([vsa])(\d+)$", tok)
    if m: return {(m.group(1), int(m.group(2)))}
    m = re.match(r"^([vsa])\[(\d+):(\d+)\]$", tok)
    if m: return {(m.group(1), i) for i in range(int(m.group(2)), int(m.group(3)) + 1)}
    if tok == "vcc": return {("s", 106), ("s", 107)}
    if tok == "vcc_lo": return {("s", 106)}
    if tok == "vcc_hi": return {("s", 107)}
    if tok == "exec": return {("s", 126), ("s", 127)}
    if tok == "m0": return {("s", 124)}
    return set()

class Ins:
    def __init__(self, text):
        self.text = text
        t = text.split(";")[0].strip()
        self.mn = t.split()[0] if t else ""
        rest = t[len(self.mn):].strip()
        ops = [x.strip() for x in re.split(r",(?![^\[]*\])", rest)] if rest else []
        self.mods = ""
        if ops:
            last = ops[-1].split()
            if last:
                ops[-1] = last[0]; self.mods = " ".join(last[1:])
        self.ops = ops
        mn = self.mn
        self.is_label = t.endswith(":") or mn.startswith(".")
        self.mfma = mn.startswith("v_mfma")
        self.valu = mn.startswith("v_") and not self.mfma
        self.trans = any(mn.startswith(x) for x in TRANS)
        self.salu = mn.startswith("s_")
        self.ds = mn.startswith("ds_")
        self.vmem = mn.startswith("buffer_") or mn.startswith("global_")
        self.lds_dma = self.vmem and (" lds" in (" " + self.mods) or "load_lds" in mn)
        R = lambda i: regs_of(ops[i]) if i < len(ops) else set()
        self.w = set(); self.r = set(); self.srcC = set(); self.srcAB = set(); self.stdata = set()
        if self.is_label: return
        if self.mfma:
            self.w = R(0); self.srcAB = R(1) | R(2); self.srcC = R(3); self.r = self.srcAB | self.srcC
            self.passes = 8 if "32x32x16" in mn else 4
        elif self.valu:
            if mn.startswith("v_cmp"):
                self.w = R(0); self.r = R(1) | R(2)
                if mn.startswith("v_cmpx"): self.w |= regs_of("exec")
            elif mn.startswith("v_permlane") and "swap" in mn:
                self.w = R(0) | R(1); self.r = R(0) | R(1)
            elif mn.startswith("v_readfirstlane") or mn.startswith("v_readlane"):
                self.w = R(0); self.r = R(1) | R(2)
            elif mn.startswith("v_add_co") or mn.startswith("v_addc_co") or mn.startswith("v_sub_co"):
                self.w = R(0) | R(1)
                for i in range(2, len(ops)): self.r |= R(i)
            else:
                self.w = R(0)
                for i in range(1, len(ops)): self.r |= R(i)
                if mn.startswith("v_fmac") or mn.startswith("v_writelane") or mn.startswith("v_dot2c") or "row_" in self.mods or "quad_perm" in self.mods:
                    self.r |= R(0)
                if mn.startswith("v_cndmask") and len(ops) == 3: self.r |= regs_of("vcc")
            self.dpp = ("row_" in self.mods or "quad_perm" in self.mods or "_dpp" in mn or "wave_" in self.mods)
        elif self.ds:
            if mn.startswith("ds_read") or mn.startswith("ds_bpermute") or mn.startswith("ds_swizzle"):
                self.w = R(0)
                for i in range(1, len(ops)): self.r |= R(i)
            else:
                for i in range(len(ops)): self.r |= R(i)
                self.stdata = set().union(*[R(i) for i in range(1, len(ops))]) if len(ops) > 1 else set()
        elif self.vmem:
            if mn in ("buffer_wbl2", "buffer_inv"): pass
            elif self.lds_dma:
                for i in range(len(ops)): self.r |= R(i)
                self.r |= regs_of("m0")
            elif "load" in mn:
                self.w = R(0)
                for i in range(1, len(ops)): self.r |= R(i)
                if "d16" in mn: self.r |= R(0)
            elif "atomic" in mn:
                for i in range(len(ops)): self.r |= R(i)
                if "sc0" in self.mods: self.w = R(0)
            else:
                for i in range(len(ops)): self.r |= R(i)
                self.stdata = R(0) if mn.startswith("buffer_") else R(1)
        elif self.salu:
            if mn.startswith("s_cmp") or mn.startswith("s_cbranch") or mn.startswith("s_branch") or mn in ("s_waitcnt", "s_barrier", "s_nop", "s_endpgm", "s_setprio", "s_sleep", "s_bitcmp1_b32", "s_bitcmp0_b32"):
                for i in range(len(ops)): self.r |= R(i)
            else:
                self.w = R(0)
                for i in range(1, len(ops)): self.r |= R(i)
                if "saveexec" in mn: self.w |= regs_of("exec")
    def states(self):
        if self.is_label or not self.mn: return 0
        if self.mn == "s_nop": return int(self.ops[0], 0) + 1
        return 1

def need_states(p, c):
    n = 0
    vw = {x for x in p.w if x[0] in "va"}
    sw = {x for x in p.w if x[0] == "s"}
    if p.valu:
        if c.mfma and (vw & c.r): n = max(n, 2)
        if p.trans and c.valu and not c.trans and (vw & c.r): n = max(n, 1)
        if p.trans and c.trans and (vw & c.r): n = max(n, 1)
        if c.valu and c.mn.startswith("v_permlane") and (vw & c.r): n = max(n, 2)
        if c.valu and getattr(c, "dpp", False) and (vw & c.r): n = max(n, 2)
        if c.valu and (c.mn.startswith("v_readfirstlane") or c.mn.startswith("v_readlane")) and (vw & c.r): n = max(n, 1)
        if sw:
            if c.valu and (sw & c.r): n = max(n, 4 if ("lane" in c.mn) else 2)
            if c.vmem and (sw & c.r): n = max(n, 5)
            if c.salu and (sw & c.r): n = max(n, 2)
            if (regs_of("exec") & sw) and (c.mfma or c.valu): n = max(n, 5)
    if p.mfma:
        big = {4: 8, 8: 12}[p.passes]
        if c.mfma:
            if p.w & c.srcAB: n = max(n, big)
            if (p.w & c.srcC) and not (p.w == c.srcC and c.passes == p.passes): n = max(n, big - 2)
            if (p.w & c.w) and not (p.w == c.w): n = max(n, big)
        elif (c.valu or c.ds or c.vmem) and (p.w & (c.r | c.w)): n = max(n, big)
        if c.valu and (p.srcC & c.w): n = max(n, {4: 3, 8: 7}[p.passes])
    if p.salu and ("s", 124) in p.w and (c.lds_dma or (c.valu and "lane" in c.mn and ("s", 124) in c.r)): n = max(n, 1)
    if p.stdata and len(p.stdata) >= 3 and (p.stdata & c.w): n = max(n, 2 if c.valu else 1)
    return n

class Asm:
    def __init__(self):
        self.ins = []
        self.vmq = []
        self.vm_done = 0
        self.lgq = []
        self.lg_done = 0
        self.nops_added = 0
    def raw(self, text):
        for l in text.split("\n"):
            if l.strip(): self.ins.append(Ins(l.strip()))
    def I(self, text):
        i = Ins(text.strip())
        assert not i.vmem or i.mn in ("buffer_wbl2", "buffer_inv"), "use vm() " + text
        assert not i.ds, "use lds() " + text
        self.ins.append(i)
    def vm(self, text, tag=None):
        self.ins.append(Ins(text.strip())); self.vmq.append(tag)
    def lds(self, text, tag=None):
        self.ins.append(Ins(text.strip())); self.lgq.append(tag)
    def _need(self, q, done, tags, cap):
        if not isinstance(tags, (list, tuple, set)) or (isinstance(tags, tuple)): tags = [tags]
        last = -1
        for t in tags:
            idx = [i for i, x in enumerate(q) if x == t]
            assert idx, ("unknown tag", t)
            last = max(last, idx[-1])
        if last < done: return None
        return min(len(q) - 1 - last, cap)
    def wait(self, vm=None, lg=None):
        parts = []
        if vm is not None:
            n = self._need(self.vmq, self.vm_done, vm, 63)
            if n is not None:
                parts.append(f"vmcnt({n})"); self.vm_done = len(self.vmq) - n
        if lg is not None:
            n = self._need(self.lgq, self.lg_done, lg, 15)
            if n is not None:
                parts.append(f"lgkmcnt({n})"); self.lg_done = len(self.lgq) - n
        if parts: self.ins.append(Ins("s_waitcnt " + " ".join(parts)))
    def wait_all(self, vm=True, lg=True):
        parts = []
        if vm: parts.append("vmcnt(0)"); self.vm_done = len(self.vmq)
        if lg: parts.append("lgkmcnt(0)"); self.lg_done = len(self.lgq)
        self.ins.append(Ins("s_waitcnt " + " ".join(parts)))
    def vm_is_done(self, tag):
        idx = [i for i, x in enumerate(self.vmq) if x == tag]
        return idx and idx[-1] < self.vm_done
    def lg_is_done(self, tag):
        idx = [i for i, x in enumerate(self.lgq) if x == tag]
        return idx and idx[-1] < self.lg_done
    def finalize(self):
        out = []
        for c in self.ins:
            if not c.is_label and c.mn:
                dist = 0; need = 0
                for p in reversed(out[-40:]):
                    if p.is_label or not p.mn: continue
                    n = need_states(p, c)
                    if n > dist: need = max(need, n - dist)
                    dist += p.states()
                    if dist >= 20: break
                if need > 0:
                    self.nops_added += 1
                    while need > 0:
                        k = min(need, 16)
                        out.append(Ins(f"s_nop {k-1}")); need -= k
            out.append(c)
        return "\n".join(("" if i.is_label else "  ") + i.text for i in out) + "\n"

def kd(name, vgpr=256, sgpr=102):
    return f""".p2align 6
.amdhsa_kernel {name}
  .amdhsa_next_free_vgpr {vgpr}
  .amdhsa_next_free_sgpr {sgpr}
  .amdhsa_accum_offset {min(256, (vgpr+3)//4*4)}
  .amdhsa_group_segment_fixed_size 0
  .amdhsa_kernarg_size 104
  .amdhsa_user_sgpr_count 2
  .amdhsa_user_sgpr_kernarg_segment_ptr 1
  .amdhsa_system_sgpr_workgroup_id_x 1
.end_amdhsa_kernel
"""
def khead(name):
    return f""".globl {name}
.p2align 8
.type {name},@function
{name}:
"""
def vr(b, n=4): return f"v[{b}:{b+n-1}]" if n > 1 else f"v{b}"
def sr(b, n=4): return f"s[{b}:{b+n-1}]" if n > 1 else f"s{b}"
```

```python
import sys, math
from asmlib import *

XN_OFF = 0
OFR = 4 << 20
HFR = 24 << 20
PART = 32 << 20
WS_BYTES = 268435456
MF = "v_mfma_f32_16x16x32_bf16"
CSCALE = (128 ** -0.5) * math.log2(math.e)

import struct
def f32(x): return "0x%08x" % struct.unpack("<I", struct.pack("<f", x))[0]

def srd(a, d, p, nbytes):
    a.I(f"s_mov_b32 s{d}, s{p}"); a.I(f"s_mov_b32 s{d+1}, s{p+1}")
    a.I(f"s_mov_b32 s{d+2}, {nbytes}"); a.I(f"s_mov_b32 s{d+3}, 0x20000")

def allsum64(a, v, t):
    for m in ("quad_perm:[1,0,3,2]", "quad_perm:[2,3,0,1]", "row_half_mirror", "row_mirror"):
        a.I(f"v_add_f32_dpp v{v}, v{v}, v{v} {m} row_mask:0xf bank_mask:0xf")
    for sw in ("v_permlane16_swap_b32", "v_permlane32_swap_b32"):
        a.I(f"v_mov_b32 v{t}, v{v}")
        a.I(f"{sw} v{v}, v{t}")
        a.I(f"v_add_f32 v{v}, v{v}, v{t}")

def rbf(a, d, s):
    a.I(f"v_cvt_pk_bf16_f32 v{d}, v{s}, v{s}")
    a.I(f"v_lshlrev_b32 v{d}, 16, v{d}")

def k0():
    a = Asm()
    a.raw("""
s_cmp_ge_u32 s2, 256
s_cbranch_scc1 L0_end
s_load_dwordx2 s[4:5], s[0:1], 0
s_load_dwordx2 s[6:7], s[0:1], 96
v_lshlrev_b32 v1, 4, v0
s_lshl_b32 s3, s2, 13
s_waitcnt lgkmcnt(0)""")
    srd(a, 8, 4, 2048*1024); srd(a, 12, 6, WS_BYTES)
    a.vm("buffer_load_dwordx4 v[4:7], v1, s[8:11], s3 offen", "x")
    a.wait(vm="x")
    for i in range(4):
        a.I(f"v_lshlrev_b32 v{8+2*i}, 16, v{4+i}")
        a.I(f"v_and_b32 v{9+2*i}, 0xffff0000, v{4+i}")
    a.I("v_add_f32 v16, v8, v9")
    for i in range(2, 8): a.I(f"v_add_f32 v16, v16, v{8+i}")
    allsum64(a, 16, 17)
    a.I(f"v_mul_f32 v16, {f32(1/512)}, v16")
    a.I("v_sub_f32 v18, v8, v16"); a.I("v_mul_f32 v19, v18, v18")
    for i in range(1, 8):
        a.I(f"v_sub_f32 v18, v{8+i}, v16"); a.I("v_fmac_f32 v19, v18, v18")
    allsum64(a, 19, 17)
    a.I(f"v_mul_f32 v19, {f32(1/512)}, v19")
    rbf(a, 16, 16); rbf(a, 19, 19)
    a.I(f"v_add_f32 v19, {f32(1e-5)}, v19"); rbf(a, 19, 19)
    a.I("v_sqrt_f32 v19, v19"); rbf(a, 19, 19)
    a.I("v_rcp_f32 v19, v19")
    for i in range(4):
        a.I(f"v_sub_f32 v{8+2*i}, v{8+2*i}, v16"); a.I(f"v_sub_f32 v{9+2*i}, v{9+2*i}, v16")
        a.I(f"v_cvt_pk_bf16_f32 v20, v{8+2*i}, v{9+2*i}")
        a.I(f"v_lshlrev_b32 v21, 16, v20"); a.I("v_and_b32 v22, 0xffff0000, v20")
        a.I("v_mul_f32 v21, v21, v19"); a.I("v_mul_f32 v22, v22, v19")
        a.I(f"v_cvt_pk_bf16_f32 v{4+i}, v21, v22")
    a.vm(f"buffer_store_dwordx4 v[4:7], v1, s[12:15], s3 offen")
    a.raw("L0_end:\ns_endpgm")
    return a.finalize()

KRING, VRING = 0, 65536
WQRING, NWQ = 24576, 5
W1RING, NW1 = 73728, 3
XRING = 98304

class R1:
    L = 1
    X0 = 2
    WQ = 6; W1 = 7; KD = 8; VD = 9
    XR = 10
    TB = 12
    W1B = 20
    KB = 23
    ST = 27
    T = 28
    POOL = 36
    ACC = 68
    FACC = 132
    XF = 156
    B1 = 188
    QF = 196
    S = 132
    P = 164
    LACC = 180
    ONE = 188

def k1(lead=5, rot=True):
    a = Asm(); r = R1
    a.raw("""
s_cmp_ge_u32 s2, 256
s_cbranch_scc1 L1_end
s_load_dwordx4 s[48:51], s[0:1], 8
s_load_dwordx2 s[52:53], s[0:1], 24
s_load_dwordx4 s[56:59], s[0:1], 48
s_load_dwordx2 s[54:55], s[0:1], 96
v_lshrrev_b32 v2, 6, v0
v_and_b32 v1, 63, v0
v_readfirstlane_b32 s36, v2
s_and_b32 s37, s2, 7
s_lshl_b32 s37, s37, 2
s_lshr_b32 s38, s2, 3
s_and_b32 s39, s38, 3
s_add_u32 s37, s37, s39
s_lshr_b32 s38, s38, 2
""")
    if rot:
        a.I("s_lshl_b32 s39, s39, 1"); a.I("s_add_u32 s39, s39, s38"); a.I("s_and_b32 s39, s39, 7")
    else:
        a.I("s_mov_b32 s39, 0")
    L, T = r.L, r.T
    a.raw("""
s_mul_i32 s47, s37, 3
s_lshl_b32 s60, s37, 1
s_add_u32 s60, s60, 22
s_cmp_lt_u32 s37, 22
s_cselect_b32 s47, s47, s60
""")
    a.I("s_lshl_b32 s60, s38, 8"); a.I("s_lshl_b32 s61, s36, 5"); a.I("s_add_u32 s60, s60, s61")
    a.I(f"v_lshrrev_b32 v{T}, 3, v{L}"); a.I(f"v_add_u32 v{T}, s60, v{T}")
    a.I(f"v_lshlrev_b32 v{T}, 10, v{T}")
    a.I(f"v_and_b32 v{T+1}, 7, v{L}"); a.I(f"v_lshrrev_b32 v{T+2}, 4, v{L}")
    a.I(f"v_xor_b32 v{T+1}, v{T+1}, v{T+2}")
    a.I(f"v_lshl_add_u32 v{r.X0}, v{T+1}, 4, v{T}")
    a.I(f"v_xor_b32 v{r.X0+1}, 64, v{r.X0}"); a.I(f"v_add_u32 v{r.X0+1}, 8192, v{r.X0+1}")
    a.I(f"v_add_u32 v{r.X0+2}, 16384, v{r.X0}"); a.I(f"v_add_u32 v{r.X0+3}, 16384, v{r.X0+1}")
    a.I("s_lshl_b32 s61, s36, 2")
    a.I(f"v_add_u32 v{T+3}, s61, v{T+2}")
    a.I(f"v_and_b32 v{T+4}, 15, v{L}")
    a.I(f"v_lshrrev_b32 v{T+5}, 1, v{T+3}"); a.I(f"v_and_b32 v{T+5}, 4, v{T+5}")
    a.I(f"v_or_b32 v{T+5}, v{T+5}, v{T+2}")
    a.I(f"v_lshlrev_b32 v{T+5}, 1, v{T+5}"); a.I(f"v_xor_b32 v{T+5}, v{T+5}, v{T+4}")
    a.I(f"v_lshlrev_b32 v{T+5}, 4, v{T+5}")
    a.I(f"v_lshl_add_u32 v{r.WQ}, v{T+3}, 13, v{T+5}")
    a.I("s_lshl_b32 s61, s37, 8"); a.I(f"v_add_u32 v{r.WQ}, s61, v{r.WQ}")
    a.I(f"v_and_b32 v{T+5}, 15, v{T+3}"); a.I(f"v_xor_b32 v{T+5}, v{T+5}, v{T+4}")
    a.I(f"v_lshlrev_b32 v{T+5}, 4, v{T+5}"); a.I(f"v_lshl_add_u32 v{r.KD}, v{T+3}, 8, v{T+5}")
    a.I(f"v_and_b32 v{T+5}, 7, v{T+3}"); a.I(f"v_lshlrev_b32 v{T+5}, 1, v{T+5}"); a.I(f"v_xor_b32 v{T+5}, v{T+5}, v{T+4}")
    a.I(f"v_lshlrev_b32 v{T+5}, 4, v{T+5}"); a.I(f"v_lshl_add_u32 v{r.VD}, v{T+3}, 8, v{T+5}")
    a.I("s_lshl_b32 s61, s36, 3")
    a.I(f"v_lshrrev_b32 v{T+5}, 3, v{L}"); a.I(f"v_add_u32 v{T+5}, s61, v{T+5}")
    a.I(f"v_and_b32 v{T+6}, 2, v{T+5}")
    a.I(f"v_lshrrev_b32 v{T+7}, 1, v{T+5}"); a.I(f"v_and_b32 v{T+7}, 4, v{T+7}")
    a.I(f"v_or_b32 v{T+6}, v{T+6}, v{T+7}")
    a.I(f"v_and_b32 v{T+7}, 7, v{L}"); a.I(f"v_xor_b32 v{T+6}, v{T+6}, v{T+7}")
    a.I(f"v_lshlrev_b32 v{T+6}, 4, v{T+6}")
    a.I(f"v_mul_u32_u24 v{T+5}, 2752, v{T+5}"); a.I(f"v_add_u32 v{r.W1}, v{T+5}, v{T+6}")
    a.I("s_lshl_b32 s61, s47, 5"); a.I(f"v_add_u32 v{r.W1}, s61, v{r.W1}")
    a.I("s_lshl_b32 s45, s36, 10")
    a.I("s_lshl_b32 s44, s36, 13"); a.I(f"s_add_u32 s44, s44, {XRING}")
    a.I("s_lshl_b32 s46, s37, 19"); a.I(f"s_add_u32 s46, s46, {1536*256}")
    a.I("s_waitcnt lgkmcnt(0)")
    srd(a, 20, 48, 32*2048*256); srd(a, 24, 50, 32*2048*256)
    srd(a, 12, 52, 512*8192); srd(a, 16, 56, 512*2752); srd(a, 32, 58, 2752)
    srd(a, 28, 54, WS_BYTES); srd(a, 8, 54, 2048*1024)

    def piece_sgprs(p, dst):
        a.I(f"s_add_u32 s{dst}, s39, {p}"); a.I(f"s_and_b32 s{dst}, s{dst}, 7")
        a.I(f"s_mul_i32 s{dst+3}, s{dst}, {64*2752}")
        a.I(f"s_lshl_b32 s{dst+1}, s{dst}, 19"); a.I(f"s_add_u32 s{dst+2}, s{dst+1}, {32*8192}")
        a.I(f"s_lshl_b32 s{dst}, s{dst}, 7")
    PS = 64
    for p in range(8): piece_sgprs(p, PS + 4*p)
    def dma_x(p, j):
        a.I(f"s_add_u32 m0, s44, {(p%2)*4096 + j*1024}")
        a.vm(f"buffer_load_dwordx4 v{r.X0+j}, s[8:11], s{PS+4*p} offen lds", ("x", p))
    def dma_wq(s):
        a.I(f"s_add_u32 m0, s45, {WQRING + (s%NWQ)*8192}")
        a.vm(f"buffer_load_dwordx4 v{r.WQ}, s[12:15], s{PS+4*(s//2)+1+(s%2)} offen lds", ("wq", s))
    def dma_w1(p):
        a.I(f"s_add_u32 m0, s45, {W1RING + (p%NW1)*8192}")
        a.vm(f"buffer_load_dwordx4 v{r.W1}, s[16:19], s{PS+4*p+3} offen lds", ("w1", p))
    def dma_kv(which, i):
        base = (KRING if which == "k" else VRING) + (i % 8)*8192
        a.I(f"s_add_u32 s62, s46, {i*8192}")
        a.I(f"s_add_u32 m0, s45, {base}")
        a.vm(f"buffer_load_dwordx4 v{r.KD if which=='k' else r.VD}, {'s[20:23]' if which=='k' else 's[24:27]'}, s62 offen lds", (which, i))
    for j in range(4): dma_x(0, j)
    dma_wq(0); dma_w1(0); dma_wq(1)
    for j in range(4): dma_x(1, j)
    dma_wq(2); dma_wq(3); dma_w1(1); dma_wq(4); dma_w1(2)
    a.I(f"v_lshlrev_b32 v{T}, 3, v{T+2}"); a.I("s_lshl_b32 s61, s47, 5")
    for t in range(3):
        a.vm(f"buffer_load_dwordx2 v[{r.B1+2*t}:{r.B1+2*t+1}], v{T}, s[32:35], s61 offen offset:{32*t}", "b1")
    a.I(f"v_lshrrev_b32 v{T+5}, 1, v{T+4}"); a.I(f"v_xor_b32 v{T+5}, v{T+5}, v{T+2}")
    a.I(f"v_lshlrev_b32 v{T+5}, 4, v{T+5}"); a.I(f"v_lshl_add_u32 v{T+5}, v{T+4}, 7, v{T+5}")
    a.I(f"v_add_u32 v{r.XR}, s44, v{T+5}"); a.I(f"v_xor_b32 v{r.XR+1}, 64, v{r.XR}")
    a.I(f"v_bfe_u32 v{T+5}, v{L}, 2, 2")
    a.I(f"v_and_b32 v{T+6}, 3, v{L}"); a.I(f"v_lshlrev_b32 v{T+6}, 3, v{T+6}")
    a.I(f"v_and_b32 v{T+7}, 1, v{T+2}")
    a.I(f"v_lshl_add_u32 v{T}, v{T+7}, 2, v{T+5}")
    a.I(f"v_lshl_add_u32 v{T}, v{T}, 5, v{T+6}")
    a.I(f"v_lshl_add_u32 v{T+1}, v{T+2}, 3, v{T+5}")
    a.I(f"v_lshl_add_u32 v{r.TB}, v{T+1}, 8, v{T}")
    for t in range(1, 8): a.I(f"v_xor_b32 v{r.TB+t}, {t*32}, v{r.TB}")
    a.I(f"v_lshrrev_b32 v{T}, 1, v{T+5}"); a.I(f"v_lshl_add_u32 v{T}, v{T+7}, 1, v{T}")
    a.I(f"v_lshl_add_u32 v{T}, v{T}, 5, v{T+6}")
    a.I(f"v_lshl_add_u32 v{T}, v{T+1}, 7, v{T}")
    a.I(f"v_add_u32 v{r.W1B}, {W1RING}, v{T}")
    for t in range(1, 3): a.I(f"v_xor_b32 v{r.W1B+t}, {t*32}, v{r.W1B}")
    a.I(f"v_xor_b32 v{T}, v{T+4}, v{T+2}"); a.I(f"v_lshlrev_b32 v{T}, 4, v{T}")
    a.I(f"v_lshl_add_u32 v{r.KB}, v{T+4}, 8, v{T}")
    for ks in range(1, 4): a.I(f"v_xor_b32 v{r.KB+ks}, {ks*64}, v{r.KB}")
    a.I(f"v_lshlrev_b32 v{r.ST}, 4, v{L}")
    a.I(f"v_lshlrev_b32 v{T+3}, 10, v{T+2}"); a.I(f"v_sub_u32 v{T+3}, {VRING}, v{T+3}")

    NP = 8
    NF = 11
    def pa_reads(n):
        s, t = divmod(n, NF)
        if s >= 16: return
        b = r.POOL + (n % NP)*4
        for rd in range(2):
            if t < 8:
                a.lds(f"ds_read_b64_tr_b16 v[{b+2*rd}:{b+2*rd+1}], v{r.TB+t} offset:{WQRING + (s%NWQ)*8192 + rd*1024}", ("f", n))
            else:
                a.lds(f"ds_read_b64_tr_b16 v[{b+2*rd}:{b+2*rd+1}], v{r.W1B+t-8} offset:{((s//2)%NW1)*8192 + (s%2)*4096 + rd*512}", ("f", n))
    def xf(s, rt): return r.XF + ((s % 4)*2 + rt)*4
    def x_reads(p):
        a.wait(vm=("x", p))
        for e in range(2):
            for rt in range(2):
                b = xf(2*p+e, rt)
                a.lds(f"ds_read_b128 v[{b}:{b+3}], v{r.XR+e} offset:{(p%2)*4096 + rt*2048}", ("xf", 2*p+e))
    x_reads(0)
    a.wait(vm=[("wq", 0), ("w1", 0)])
    a.I("s_barrier")
    for n in range(lead): pa_reads(n)
    kv_early = [("k", 0), ("k", 1), ("v", 0), ("k", 2)]
    for s in range(16):
        p = s // 2
        dmas = []
        pre_dmas = []
        if s % 2 == 0 and p + 2 < 8:
            pre_dmas += [(lambda j=j, p=p: dma_x(p+2, j)) for j in range(4)] if p >= 0 else []
        if s >= 1 and s + 4 < 16: dmas.append(lambda s=s: dma_wq(s+4))
        if s % 2 == 0 and p >= 1 and p + 2 < 8: dmas.append(lambda p=p: dma_w1(p+2))
        if s >= 11 and kv_early and s % 2 == 1:
            x = kv_early.pop(0); dmas.append(lambda x=x: dma_kv(*x))
            if s >= 13 and kv_early:
                x = kv_early.pop(0); dmas.append(lambda x=x: dma_kv(*x))
        for t in range(NF):
            n = s*NF + t
            b = r.POOL + (n % NP)*4
            a.wait(lg=[("f", n), ("xf", s)])
            for rt in range(2):
                d = (r.ACC + (t*2 + rt)*4) if t < 8 else (r.FACC + ((t-8)*2 + rt)*4)
                c = "0" if s == 0 else vr(d)
                a.I(f"{MF} {vr(d)}, {vr(b)}, {vr(xf(s, rt))}, {c}")
                if rt == 0 and pre_dmas and t < 5: pre_dmas.pop(0)()
            if t == NF - lead - 1 and s < 15:
                tags = [("wq", s+1), ("w1", (s+1)//2)]
                a.wait(vm=tags)
                a.I("s_barrier")
            pa_reads(n + lead)
            if t > NF - lead - 1 and dmas: dmas.pop(0)()
            if s % 2 == 1 and t == 2 and p + 1 < 8: x_reads(p + 1)
        assert not dmas and not pre_dmas, (s, dmas, pre_dmas)
    assert not kv_early
    a.I(f"s_mov_b32 s60, {f32(CSCALE)}")
    for rt in range(2):
        for ks in range(4):
            q = r.QF + (rt*4 + ks)*4
            for hh in range(2):
                d = r.ACC + ((2*ks+hh)*2 + rt)*4
                for i in range(4): a.I(f"v_mul_f32 v{d+i}, s60, v{d+i}")
                a.I(f"v_cvt_pk_bf16_f32 v{q+2*hh}, v{d}, v{d+1}")
                a.I(f"v_cvt_pk_bf16_f32 v{q+2*hh+1}, v{d+2}, v{d+3}")
    for rt in range(2):
        for ks in range(4):
            q = r.QF + (rt*4 + ks)*4
            for i in range(2): a.I(f"v_permlane32_swap_b32 v{q+i}, v{q+2+i}")
    for rt in range(2):
        for ks in range(4):
            q = r.QF + (rt*4 + ks)*4
            for i in range(2): a.I(f"v_permlane16_swap_b32 v{q+i}, v{q+2+i}")
    a.wait(vm=[("k", 0), ("k", 1), "b1"])
    a.I("s_barrier")
    for t in range(8): a.I(f"v_add_u32 v{r.TB+t}, v{T+3}, v{r.TB+t}")
    a.I("s_lshl_b32 s60, s38, 4"); a.I("s_lshl_b32 s61, s36, 1"); a.I("s_add_u32 s60, s60, s61")
    a.I(f"s_mul_i32 s61, s60, {43*1024}"); a.I(f"s_add_u32 s61, s61, {HFR}")
    a.I(f"s_lshl_b32 s63, s60, 17"); a.I("s_lshl_b32 s96, s37, 12"); a.I("s_add_u32 s63, s63, s96"); a.I(f"s_add_u32 s63, s63, {OFR}")
    for t in range(3):
        if t == 2:
            a.I("s_cmp_ge_u32 s37, 22"); a.I("s_cbranch_scc1 L1_skipH")
        a.I(f"s_add_u32 s96, s47, {t}"); a.I("s_lshr_b32 s97, s96, 1"); a.I("s_lshl_b32 s97, s97, 10")
        a.I("s_and_b32 s96, s96, 1"); a.I("s_lshl_b32 s96, s96, 3"); a.I("s_add_u32 s96, s96, s97"); a.I("s_add_u32 s96, s96, s61")
        a.I(f"s_add_u32 s97, s96, {43*1024}")
        bb = r.B1 + 2*t
        a.I(f"v_lshlrev_b32 v{T}, 16, v{bb}"); a.I(f"v_and_b32 v{T+1}, 0xffff0000, v{bb}")
        a.I(f"v_lshlrev_b32 v{T+4}, 16, v{bb+1}"); a.I(f"v_and_b32 v{T+5}, 0xffff0000, v{bb+1}")
        bias = [T, T+1, T+4, T+5]
        for rt in range(2):
            d = r.FACC + (t*2 + rt)*4
            for i in range(4): a.I(f"v_add_f32 v{d+i}, v{d+i}, v{bias[i]}")
            for i in range(4): a.I(f"v_max_f32 v{d+i}, 0, v{d+i}")
            for i in range(4): a.I(f"v_mul_f32 v{d+i}, v{d+i}, v{d+i}")
            a.I(f"v_cvt_pk_bf16_f32 v{d}, v{d}, v{d+1}"); a.I(f"v_cvt_pk_bf16_f32 v{d+1}, v{d+2}, v{d+3}")
            ins = f"buffer_store_dwordx2 v[{d}:{d+1}], v{r.ST}, s[28:31], s{96+rt} offen"
            if t < 2: a.vm(ins, "hst")
            else: a.raw(ins)
    a.raw("L1_skipH:")
    for x in [("k", 3), ("v", 1), ("k", 4), ("v", 2)]: dma_kv(*x)
    for i in range(4): a.I(f"v_mov_b32 v{r.ONE+i}, 0x3f803f80")
    leadb = 6
    seq = []
    seq += [("k", 0, j) for j in range(8)]
    for i in range(17):
        if i + 1 < 16: seq += [("k", i+1, j) for j in range(8)]
        if i >= 1: seq += [("v", i-1, j) for j in range(8)]
    def pb_reads(n):
        if n >= len(seq): return
        kind, i, j = seq[n]
        b = r.POOL + (n % NP)*4
        if kind == "k":
            a.lds(f"ds_read_b128 {vr(b)}, v{r.KB + j%4} offset:{KRING + (i%8)*8192 + (j//4)*4096}", ("g", n))
        else:
            for rd in range(2):
                a.lds(f"ds_read_b64_tr_b16 v[{b+2*rd}:{b+2*rd+1}], v{r.TB+j} offset:{(i%8)*8192 + rd*4096}", ("g", n))
    def Sreg(i, rt, kt): return r.S + (i % 2)*16 + (rt*2 + kt)*4
    def Preg(i, rt): return r.P + (i % 2)*8 + rt*4
    def softmax_ops(i):
        ops = []
        sb = r.S + (i % 2)*16; pb = r.P + (i % 2)*8
        for k in range(16):
            ops.append(f"v_exp_f32 v{sb+k}, v{sb+k}")
            if k >= 2 and k % 2 == 0: ops.append(f"v_cvt_pk_bf16_f32 v{pb+(k-2)//2}, v{sb+k-2}, v{sb+k-1}")
        ops.append(f"v_cvt_pk_bf16_f32 v{pb+7}, v{sb+14}, v{sb+15}")
        return ops
    guarded = {("k", 0), ("k", 1)}
    for n in range(leadb): pb_reads(n)
    n = 0
    steps = [(-1, [seq[j] for j in range(8)])]
    pos = 8
    for i in range(17):
        cnt = (8 if i + 1 < 16 else 0) + (8 if i >= 1 else 0)
        steps.append((i, seq[pos:pos+cnt])); pos += cnt
    for (i, frs) in steps:
        valu = softmax_ops(i) if 0 <= i < 16 else []
        nm = 2*len(frs) + (2 if i >= 1 else 0)
        cost = lambda s: 2.0 if "v_exp" in s else 1.0
        tot = sum(cost(v) for v in valu); acc = 0.0; mi = 0
        dm = []
        if 0 <= i:
            if i + 5 < 16: dm.append(("k", i+5))
            if i + 3 < 16: dm.append(("v", i+3))
        def fill():
            nonlocal acc, mi
            mi += 1
            while valu and (acc + cost(valu[0])/2 <= tot*mi/nm):
                v = valu.pop(0); acc += cost(v); a.I(v)
        for fi, (kind, ii, j) in enumerate(frs):
            b = r.POOL + (n % NP)*4
            a.wait(lg=("g", n))
            for rt in range(2):
                if kind == "k":
                    kt, ks = j // 4, j % 4
                    d = Sreg(ii, rt, kt)
                    a.I(f"{MF} {vr(d)}, {vr(b)}, {vr(r.QF + (rt*4+ks)*4)}, {'0' if ks == 0 else vr(d)}")
                else:
                    d = r.ACC + (j*2 + rt)*4
                    a.I(f"{MF} {vr(d)}, {vr(b)}, {vr(Preg(ii, rt))}, {'0' if ii == 0 else vr(d)}")
                if rt == 0: fill()
            nn = n + leadb
            if nn < len(seq) and seq[nn][:2] not in guarded:
                k2, i2, _ = seq[nn]
                if k2 == "k":
                    tags = [("k", i2)] + ([("v", i2-2)] if i2 >= 2 else [])
                else:
                    tags = [("v", i2)]
                a.wait(vm=tags); a.I("s_barrier")
                for tg in tags: guarded.add(tg)
            pb_reads(nn)
            if dm and fi in (2, 5): dma_kv(*dm.pop(0))
            fill()
            if kind == "v" and j == 3:
                for rt in range(2):
                    l = r.LACC + rt*4
                    a.I(f"{MF} {vr(l)}, {vr(r.ONE)}, {vr(Preg(ii, rt))}, {'0' if ii == 0 else vr(l)}")
                    fill()
            n += 1
        while valu: a.I(valu.pop(0))
        assert not dm, (i, dm)
    for rt in range(2): a.I(f"v_rcp_f32 v{T+rt}, v{r.LACC+rt*4}")
    for rt in range(2):
        for ks in range(4):
            o = r.QF + (rt*4 + ks)*4
            for hh in range(2):
                d = r.ACC + ((2*ks+hh)*2 + rt)*4
                for i in range(4): a.I(f"v_mul_f32 v{d+i}, v{T+rt}, v{d+i}")
                a.I(f"v_cvt_pk_bf16_f32 v{o+2*hh}, v{d}, v{d+1}")
                a.I(f"v_cvt_pk_bf16_f32 v{o+2*hh+1}, v{d+2}, v{d+3}")
            if ks == 0 and rt == 1: a.I(f"s_add_u32 s63, s63, {128*1024}")
            a.vm(f"buffer_store_dwordx4 {vr(o)}, v{r.ST}, s[28:31], s63 offen offset:{ks*1024}")
    a.raw("L1_end:\ns_endpgm")
    return a.finalize(), a

class R2:
    L = 1; WD = 2; BD = 3; ST = 4; T = 6
    TB = 16
    POOL = 32
    ACC = 64
    BF = 128
NSLOT2 = 8
NB2 = 8
def k2_common(a):
    a.raw("""
v_lshrrev_b32 v2, 6, v0
v_and_b32 v1, 63, v0
v_readfirstlane_b32 s36, v2
s_and_b32 s37, s2, 7
s_lshr_b32 s38, s37, 1
s_and_b32 s37, s37, 1
s_lshl_b32 s37, s37, 3
s_lshr_b32 s39, s2, 3
s_lshr_b32 s40, s39, 2
s_add_u32 s37, s37, s40
s_and_b32 s39, s39, 3
""")

def k2(lead=5):
    a = Asm(); r = R2; L, T = r.L, r.T
    a.raw("""
s_cmp_ge_u32 s2, 256
s_cbranch_scc1 L2_end
s_load_dwordx2 s[48:49], s[0:1], 32
s_load_dwordx2 s[50:51], s[0:1], 64
s_load_dwordx2 s[54:55], s[0:1], 96
""")
    k2_common(a)
    a.raw("""
s_lshr_b32 s41, s36, 2
s_and_b32 s42, s36, 3
s_lshl_b32 s45, s36, 10
""")
    a.I(f"v_lshrrev_b32 v{T+2}, 4, v{L}"); a.I(f"v_and_b32 v{T+4}, 15, v{L}")
    a.I("s_lshl_b32 s61, s36, 2"); a.I(f"v_add_u32 v{T+3}, s61, v{T+2}")
    a.I(f"v_and_b32 v{T+5}, 7, v{T+3}"); a.I(f"v_lshlrev_b32 v{T+5}, 1, v{T+5}"); a.I(f"v_xor_b32 v{T+5}, v{T+5}, v{T+4}")
    a.I(f"v_lshlrev_b32 v{T+5}, 4, v{T+5}"); a.I(f"v_lshl_add_u32 v{r.WD}, v{T+3}, 10, v{T+5}")
    a.I("s_lshl_b32 s61, s39, 8"); a.I(f"v_add_u32 v{r.WD}, s61, v{r.WD}")
    a.I(f"v_lshlrev_b32 v{r.ST}, 4, v{L}")
    a.raw(f"""
s_mul_i32 s43, s38, {43*32768}
s_lshl_b32 s60, s37, 3
s_lshl_b32 s61, s42, 1
s_add_u32 s60, s60, s61
s_lshl_b32 s44, s60, 7
s_mul_i32 s61, s38, 43
s_add_u32 s44, s44, s61
s_add_u32 s44, s44, s41
s_lshl_b32 s44, s44, 10
s_add_u32 s44, s44, {OFR}
s_mul_i32 s61, s60, 43
s_add_u32 s61, s61, s41
s_lshl_b32 s61, s61, 10
s_add_u32 s61, s61, {HFR}
s_mov_b32 s46, {128*1024}
s_cmp_eq_u32 s38, 3
s_cselect_b32 s43, 0, s43
s_cselect_b32 s44, s61, s44
s_cselect_b32 s46, {43*1024}, s46
s_add_u32 s46, s46, s44
s_waitcnt lgkmcnt(0)
s_mov_b32 s14, {4096*1024}
s_cmp_eq_u32 s38, 3
s_cselect_b32 s12, s50, s48
s_cselect_b32 s13, s51, s49
s_cselect_b32 s14, {1376*1024}, s14
s_mov_b32 s15, 0x20000
""")
    srd(a, 28, 54, WS_BYTES)
    NI = 22
    def dma_w(t, e):
        a.I(f"s_add_u32 s62, s43, {(2*t+e)*32768}")
        a.I(f"s_add_u32 m0, s45, {(t%NSLOT2)*16384 + e*8192}")
        a.vm(f"buffer_load_dwordx4 v{r.WD}, s[12:15], s62 offen lds", ("w", t))
    def bf(t, rt): return r.BF + ((t % NB2)*2 + rt)*4
    def load_b(t, rt):
        tt = min(t, 20)
        a.I(f"s_add_u32 s62, s{44 if rt == 0 else 46}, {t*2048}")
        a.vm(f"buffer_load_dwordx4 {vr(bf(t, rt))}, v{r.ST}, s[28:31], s62 offen", ("b", t))
    DEP = 6
    for t in range(DEP):
        dma_w(t, 0); load_b(t, 0); dma_w(t, 1); load_b(t, 1)
    a.I(f"v_bfe_u32 v{T+5}, v{L}, 2, 2")
    a.I(f"v_lshl_add_u32 v{T+1}, v{T+2}, 2, v{T+5}")
    a.I(f"v_and_b32 v{T}, 7, v{T+1}")
    a.I("s_lshl_b32 s60, s41, 2"); a.I(f"v_xor_b32 v{T}, s60, v{T}")
    a.I(f"v_and_b32 v{T+6}, 3, v{L}"); a.I(f"v_lshlrev_b32 v{T+6}, 3, v{T+6}")
    a.I(f"v_lshl_add_u32 v{T}, v{T}, 5, v{T+6}")
    a.I(f"v_lshl_add_u32 v{T}, v{T+1}, 8, v{T}")
    a.I("s_lshl_b32 s60, s41, 13"); a.I(f"v_add_u32 v{r.TB}, s60, v{T}")
    for t in range(1, 8): a.I(f"v_xor_b32 v{r.TB+t}, {t*32}, v{r.TB}")
    for t in range(8): a.I(f"v_add_u32 v{r.TB+8+t}, 0x10000, v{r.TB+t}")
    a.raw("""
s_cmp_lg_u32 s38, 2
s_cselect_b32 s47, 1, 0
s_cmp_eq_u32 s41, 0
s_cselect_b32 s47, s47, 0
""")
    NP = 8
    def reads(n):
        t, T_ = divmod(n, 8)
        if t >= NI: return
        b = r.POOL + (n % NP)*4
        sl = t % NSLOT2
        for rd in range(2):
            a.lds(f"ds_read_b64_tr_b16 v[{b+2*rd}:{b+2*rd+1}], v{r.TB + 8*(sl//4) + T_} offset:{(sl%4)*16384 + rd*4096}", ("f", n))
    a.wait(vm=("w", 0)); a.I("s_barrier")
    for n in range(lead): reads(n)
    for t in range(NI):
        if t == NI - 1:
            a.wait(vm=("b", t)); a.wait_all(vm=False)
            a.I("s_cmp_eq_u32 s47, 0"); a.I("s_cbranch_scc1 L2_skip")
        todo = []
        if t + DEP < NI: todo = [lambda: dma_w(t+DEP, 0), lambda: load_b(t+DEP, 0), lambda: dma_w(t+DEP, 1), lambda: load_b(t+DEP, 1)]
        for T_ in range(8):
            n = t*8 + T_
            b = r.POOL + (n % NP)*4
            a.wait(vm=("b", t), lg=("f", n))
            for rt in range(2):
                d = r.ACC + (T_*2 + rt)*4
                a.I(f"{MF} {vr(d)}, {vr(b)}, {vr(bf(t, rt))}, {'0' if t == 0 else vr(d)}")
            if T_ == 8 - lead - 1 and t + 1 < NI:
                a.wait(vm=("w", t+1)); a.I("s_barrier")
            reads(n + lead)
            if T_ >= 8 - lead - 1 and todo: todo.pop(0)()
        assert not todo
    a.raw("L2_skip:")
    a.wait_all()
    a.I("s_barrier")
    a.I("s_lshl_b32 s60, s36, 13"); a.I(f"v_add_u32 v{T}, s60, v{r.ST}")
    a.I("s_xor_b32 s60, s60, 0x8000"); a.I(f"v_add_u32 v{T+1}, s60, v{r.ST}")
    for k in range(8):
        a.lds(f"ds_write_b128 v{T}, {vr(r.ACC + 32 + k*4)} offset:{k*1024}", "pw")
    a.wait(lg="pw"); a.I("s_barrier")
    for k in range(8):
        a.lds(f"ds_read_b128 {vr(r.POOL + k*4)}, v{T+1} offset:{k*1024}", ("pr", k))
    a.raw(f"""
s_lshl_b32 s60, s37, 2
s_add_u32 s60, s60, s39
s_lshl_b32 s60, s60, 4
s_add_u32 s60, s60, s38
s_lshl_b32 s60, s60, 13
s_add_u32 s60, s60, s45
s_add_u32 s60, s60, {PART}
""")
    for k in range(8):
        a.wait(lg=("pr", k))
        for i in range(4): a.I(f"v_add_f32 v{r.ACC+k*4+i}, v{r.ACC+k*4+i}, v{r.POOL+k*4+i}")
    for jj in range(4):
        o = r.BF + jj*4
        for hh in range(2):
            d = r.ACC + ((2*(jj//2) + hh)*2 + jj % 2)*4
            a.I(f"v_cvt_pk_bf16_f32 v{o+2*hh}, v{d}, v{d+1}"); a.I(f"v_cvt_pk_bf16_f32 v{o+2*hh+1}, v{d+2}, v{d+3}")
        a.vm(f"buffer_store_dwordx4 {vr(o)}, v{r.ST}, s[28:31], s60 offen")
        a.I(f"s_add_u32 s60, s60, {4*8192}")
    a.raw("L2_end:\ns_endpgm")
    return a.finalize(), a

def k3():
    a = Asm()
    a.raw("""
s_cmp_ge_u32 s2, 256
s_cbranch_scc1 L3_end
s_load_dwordx2 s[48:49], s[0:1], 0
s_load_dwordx4 s[52:55], s[0:1], 72
s_load_dwordx2 s[56:57], s[0:1], 96
""")
    k2_common(a)
    a.raw(f"""
s_lshr_b32 s41, s36, 2
s_and_b32 s42, s36, 3
s_lshl_b32 s60, s37, 2
s_add_u32 s60, s60, s39
s_lshl_b32 s60, s60, 2
s_add_u32 s60, s60, s38
s_lshl_b32 s60, s60, 15
s_lshl_b32 s61, s36, 10
s_add_u32 s60, s60, s61
s_add_u32 s60, s60, {PART}
s_lshl_b32 s43, s37, 7
s_lshl_b32 s61, s42, 5
s_add_u32 s43, s43, s61
s_and_b32 s61, s38, 1
s_lshl_b32 s61, s61, 4
s_add_u32 s43, s43, s61
s_lshl_b32 s44, s39, 7
s_lshl_b32 s61, s41, 6
s_add_u32 s44, s44, s61
s_lshr_b32 s61, s38, 1
s_lshl_b32 s61, s61, 5
s_add_u32 s44, s44, s61
s_lshl_b32 s44, s44, 1
s_lshl_b32 s43, s43, 10
s_add_u32 s43, s43, s44
v_lshlrev_b32 v4, 4, v1
v_and_b32 v5, 15, v1
v_lshrrev_b32 v6, 4, v1
v_lshlrev_b32 v7, 4, v6
v_lshl_add_u32 v5, v5, 10, v7
v_lshlrev_b32 v7, 3, v6
s_waitcnt lgkmcnt(0)
""")
    srd(a, 8, 48, 2048*1024); srd(a, 12, 52, 1024); srd(a, 16, 54, 2048*1024); srd(a, 28, 56, WS_BYTES)
    for s in range(4):
        a.vm(f"buffer_load_dwordx4 {vr(16+4*s)}, v4, s[28:31], s60 offen", "p")
        a.I("s_add_u32 s60, s60, 8192")
    a.vm("buffer_load_dwordx4 v[32:35], v5, s[8:11], s43 offen", "p")
    a.vm("buffer_load_dwordx2 v[36:37], v7, s[12:15], s44 offen", "p")
    a.vm("buffer_load_dwordx2 v[38:39], v7, s[12:15], s44 offen offset:32", "p")
    a.wait(vm="p")
    final_math(a, P=[16, 20, 24], F=28, X=32, B=36, T=40)
    a.vm("buffer_store_dwordx4 v[32:35], v5, s[16:19], s43 offen")
    a.raw("L3_end:\ns_endpgm")
    return a.finalize()

def final_math(a, P, F, X, B, T):
    for i in range(2): a.I(f"v_permlane16_swap_b32 v{X+i}, v{X+2+i}")
    for i in range(2): a.I(f"v_permlane32_swap_b32 v{X+i}, v{X+2+i}")
    def unpack(d, s, hi):
        a.I(f"v_and_b32 v{d}, 0xffff0000, v{s}" if hi else f"v_lshlrev_b32 v{d}, 16, v{s}")
    for i in range(4):
        res = []
        for hi in range(2):
            s_, t1, t2, g_ = T + 4*hi, T + 4*hi + 1, T + 4*hi + 2, T + 4*hi + 3
            unpack(s_, P[0]+i, hi)
            for p in P[1:]:
                unpack(t1, p+i, hi); a.I(f"v_add_f32 v{s_}, v{s_}, v{t1}")
            rbf(a, s_, s_)
            unpack(g_, F+i, hi); unpack(t1, B+i, hi)
            a.I(f"v_add_f32 v{g_}, v{g_}, v{t1}"); rbf(a, g_, g_)
            a.I(f"v_mul_f32 v{t1}, {f32(-math.log2(math.e))}, v{g_}")
            a.I(f"v_exp_f32 v{t1}, v{t1}"); a.I(f"v_add_f32 v{t1}, 1.0, v{t1}")
            a.I(f"v_rcp_f32 v{t1}, v{t1}"); a.I(f"v_mul_f32 v{g_}, v{g_}, v{t1}"); rbf(a, g_, g_)
            a.I(f"v_mul_f32 v{s_}, v{s_}, v{g_}"); rbf(a, s_, s_)
            unpack(t1, X+i, hi); a.I(f"v_add_f32 v{s_}, v{s_}, v{t1}")
        a.I(f"v_cvt_pk_bf16_f32 v{X+i}, v{T}, v{T+4}")
    for i in range(2): a.I(f"v_permlane32_swap_b32 v{X+i}, v{X+2+i}")
    for i in range(2): a.I(f"v_permlane16_swap_b32 v{X+i}, v{X+2+i}")

def build():
    o = """; generated by gen/kern.py
; @launch kernel=ln_kernel grid=(256,1,1) block=(512,1,1) lds=0
; @launch kernel=attn_kernel grid=(256,1,1) block=(512,1,1) lds=163840
; @launch kernel=gemm_kernel grid=(256,1,1) block=(512,1,1) lds=131072
; @launch kernel=fin_kernel grid=(256,1,1) block=(512,1,1) lds=0
.amdgcn_target "amdgcn-amd-amdhsa--gfx950"
.text
"""
    o += khead("ln_kernel") + k0()
    t, a1 = k1(); o += khead("attn_kernel") + t
    t, a2 = k2(); o += khead("gemm_kernel") + t
    o += khead("fin_kernel") + k3()
    o += '.section .rodata,"a"\n' + kd("ln_kernel", 32) + kd("attn_kernel") + kd("gemm_kernel") + kd("fin_kernel", 64)
    print("nops added:", a1.nops_added, a2.nops_added, file=sys.stderr)
    return o
if __name__ == "__main__":
    open(sys.argv[1], "w").write(build())
```

```python
import re

TRANS = ("v_exp_f32", "v_log_f32", "v_rcp_f32", "v_rsq_f32", "v_sqrt_f32", "v_sin_f32", "v_cos_f32")

def regs_of(tok):
    tok = tok.strip()
    tok = tok.lstrip("-")
    m = re.match(r"^abs\((.*)\)$", tok) or re.match(r"^\|(.*)\|$", tok)
    if m: tok = m.group(1)
    m = re.match(r"^([vsa])(\d+)$", tok)
    if m: return {(m.group(1), int(m.group(2)))}
    m = re.match(r"^([vsa])\[(\d+):(\d+)\]$", tok)
    if m: return {(m.group(1), i) for i in range(int(m.group(2)), int(m.group(3)) + 1)}
    if tok == "vcc": return {("s", 106), ("s", 107)}
    if tok == "vcc_lo": return {("s", 106)}
    if tok == "vcc_hi": return {("s", 107)}
    if tok == "exec": return {("s", 126), ("s", 127)}
    if tok == "m0": return {("s", 124)}
    return set()

class Ins:
    def __init__(self, text):
        self.text = text
        t = text.split(";")[0].strip()
        self.mn = t.split()[0] if t else ""
        rest = t[len(self.mn):].strip()
        ops = [x.strip() for x in re.split(r",(?![^\[]*\])", rest)] if rest else []
        self.mods = ""
        if ops:
            last = ops[-1].split()
            if last:
                ops[-1] = last[0]; self.mods = " ".join(last[1:])
        self.ops = ops
        mn = self.mn
        self.is_label = t.endswith(":") or mn.startswith(".")
        self.mfma = mn.startswith("v_mfma")
        self.valu = mn.startswith("v_") and not self.mfma
        self.trans = any(mn.startswith(x) for x in TRANS)
        self.salu = mn.startswith("s_")
        self.ds = mn.startswith("ds_")
        self.vmem = mn.startswith("buffer_") or mn.startswith("global_")
        self.lds_dma = self.vmem and (" lds" in (" " + self.mods) or "load_lds" in mn)
        R = lambda i: regs_of(ops[i]) if i < len(ops) else set()
        self.w = set(); self.r = set(); self.srcC = set(); self.srcAB = set(); self.stdata = set()
        if self.is_label: return
        if self.mfma:
            self.w = R(0); self.srcAB = R(1) | R(2); self.srcC = R(3); self.r = self.srcAB | self.srcC
            self.passes = 8 if "32x32x16" in mn else 4
        elif self.valu:
            if mn.startswith("v_cmp"):
                self.w = R(0); self.r = R(1) | R(2)
                if mn.startswith("v_cmpx"): self.w |= regs_of("exec")
            elif mn.startswith("v_permlane") and "swap" in mn:
                self.w = R(0) | R(1); self.r = R(0) | R(1)
            elif mn.startswith("v_readfirstlane") or mn.startswith("v_readlane"):
                self.w = R(0); self.r = R(1) | R(2)
            elif mn.startswith("v_add_co") or mn.startswith("v_addc_co") or mn.startswith("v_sub_co"):
                self.w = R(0) | R(1)
                for i in range(2, len(ops)): self.r |= R(i)
            else:
                self.w = R(0)
                for i in range(1, len(ops)): self.r |= R(i)
                if mn.startswith("v_fmac") or mn.startswith("v_writelane") or mn.startswith("v_dot2c") or "row_" in self.mods or "quad_perm" in self.mods:
                    self.r |= R(0)
                if mn.startswith("v_cndmask") and len(ops) == 3: self.r |= regs_of("vcc")
            self.dpp = ("row_" in self.mods or "quad_perm" in self.mods or "_dpp" in mn or "wave_" in self.mods)
        elif self.ds:
            if mn.startswith("ds_read") or mn.startswith("ds_bpermute") or mn.startswith("ds_swizzle"):
                self.w = R(0)
                for i in range(1, len(ops)): self.r |= R(i)
            else:
                for i in range(len(ops)): self.r |= R(i)
                self.stdata = set().union(*[R(i) for i in range(1, len(ops))]) if len(ops) > 1 else set()
        elif self.vmem:
            if mn in ("buffer_wbl2", "buffer_inv"): pass
            elif self.lds_dma:
                for i in range(len(ops)): self.r |= R(i)
                self.r |= regs_of("m0")
            elif "load" in mn:
                self.w = R(0)
                for i in range(1, len(ops)): self.r |= R(i)
                if "d16" in mn: self.r |= R(0)
            elif "atomic" in mn:
                for i in range(len(ops)): self.r |= R(i)
                if "sc0" in self.mods: self.w = R(0)
            else:
                for i in range(len(ops)): self.r |= R(i)
                self.stdata = R(0) if mn.startswith("buffer_") else R(1)
        elif self.salu:
            if mn.startswith("s_cmp") or mn.startswith("s_cbranch") or mn.startswith("s_branch") or mn in ("s_waitcnt", "s_barrier", "s_nop", "s_endpgm", "s_setprio", "s_sleep", "s_bitcmp1_b32", "s_bitcmp0_b32"):
                for i in range(len(ops)): self.r |= R(i)
            else:
                self.w = R(0)
                for i in range(1, len(ops)): self.r |= R(i)
                if "saveexec" in mn: self.w |= regs_of("exec")
    cond = False
    def states(self):
        if self.is_label or not self.mn or self.cond: return 0
        if self.mn == "s_nop": return int(self.ops[0], 0) + 1
        return 1

def need_states(p, c):
    n = 0
    vw = {x for x in p.w if x[0] in "va"}
    sw = {x for x in p.w if x[0] == "s"}
    if p.valu:
        if c.mfma and (vw & c.r): n = max(n, 2)
        if p.trans and c.valu and not c.trans and (vw & c.r): n = max(n, 1)
        if p.trans and c.trans and (vw & c.r): n = max(n, 1)
        if c.valu and c.mn.startswith("v_permlane") and (vw & c.r): n = max(n, 2)
        if c.valu and getattr(c, "dpp", False) and (vw & c.r): n = max(n, 2)
        if c.valu and (c.mn.startswith("v_readfirstlane") or c.mn.startswith("v_readlane")) and (vw & c.r): n = max(n, 1)
        if sw:
            if c.valu and (sw & c.r): n = max(n, 4 if ("lane" in c.mn) else 2)
            if c.vmem and (sw & c.r): n = max(n, 5)
            if c.salu and (sw & c.r): n = max(n, 2)
            if (regs_of("exec") & sw) and (c.mfma or c.valu): n = max(n, 5)
    if p.mfma:
        big = {4: 8, 8: 12}[p.passes]
        if c.mfma:
            if p.w & c.srcAB: n = max(n, big)
            if (p.w & c.srcC) and not (p.w == c.srcC and c.passes == p.passes): n = max(n, big - 2)
            if (p.w & c.w) and not (p.w == c.w): n = max(n, big)
        elif (c.valu or c.ds or c.vmem) and (p.w & (c.r | c.w)): n = max(n, big)
        if c.valu and (p.srcC & c.w): n = max(n, {4: 3, 8: 7}[p.passes])
    if p.salu and ("s", 124) in p.w and (c.lds_dma or (c.valu and "lane" in c.mn and ("s", 124) in c.r)): n = max(n, 1)
    if p.stdata and len(p.stdata) >= 3 and (p.stdata & c.w): n = max(n, 2 if c.valu else 1)
    return n

class Asm:
    def __init__(self):
        self.ins = []
        self.vmq = []
        self.vm_done = 0
        self.lgq = []
        self.lg_done = 0
        self.nops_added = 0
    def raw(self, text):
        for l in text.split("\n"):
            if l.strip(): self.ins.append(Ins(l.strip()))
    def I(self, text):
        i = Ins(text.strip())
        assert not i.vmem or i.mn in ("buffer_wbl2", "buffer_inv"), "use vm() " + text
        assert not i.ds, "use lds() " + text
        self.ins.append(i)
    def C(self, text):
        self.I(text); self.ins[-1].cond = True
    def vm(self, text, tag=None):
        self.ins.append(Ins(text.strip())); self.vmq.append(tag)
    def lds(self, text, tag=None):
        self.ins.append(Ins(text.strip())); self.lgq.append(tag)
    def _need(self, q, done, tags, cap):
        if not isinstance(tags, (list, tuple, set)) or (isinstance(tags, tuple)): tags = [tags]
        last = -1
        for t in tags:
            idx = [i for i, x in enumerate(q) if x == t]
            assert idx, ("unknown tag", t)
            last = max(last, idx[-1])
        if last < done: return None
        return min(len(q) - 1 - last, cap)
    def wait(self, vm=None, lg=None):
        parts = []
        if vm is not None:
            n = self._need(self.vmq, self.vm_done, vm, 63)
            if n is not None:
                parts.append(f"vmcnt({n})"); self.vm_done = len(self.vmq) - n
        if lg is not None:
            n = self._need(self.lgq, self.lg_done, lg, 15)
            if n is not None:
                parts.append(f"lgkmcnt({n})"); self.lg_done = len(self.lgq) - n
        if parts: self.ins.append(Ins("s_waitcnt " + " ".join(parts)))
    def wait_all(self, vm=True, lg=True):
        parts = []
        if vm: parts.append("vmcnt(0)"); self.vm_done = len(self.vmq)
        if lg: parts.append("lgkmcnt(0)"); self.lg_done = len(self.lgq)
        self.ins.append(Ins("s_waitcnt " + " ".join(parts)))
    def vm_is_done(self, tag):
        idx = [i for i, x in enumerate(self.vmq) if x == tag]
        return idx and idx[-1] < self.vm_done
    def lg_is_done(self, tag):
        idx = [i for i, x in enumerate(self.lgq) if x == tag]
        return idx and idx[-1] < self.lg_done
    def finalize(self):
        out = []
        for c in self.ins:
            if not c.is_label and c.mn:
                dist = 0; need = 0
                for p in reversed(out[-40:]):
                    if p.is_label or not p.mn: continue
                    n = need_states(p, c)
                    if n > dist: need = max(need, n - dist)
                    dist += p.states()
                    if dist >= 20: break
                if need > 0:
                    self.nops_added += 1
                    while need > 0:
                        k = min(need, 16)
                        out.append(Ins(f"s_nop {k-1}")); need -= k
            out.append(c)
        return "\n".join(("" if i.is_label else "  ") + i.text for i in out) + "\n"

def kd(name, vgpr=256, sgpr=102):
    return f""".p2align 6
.amdhsa_kernel {name}
  .amdhsa_next_free_vgpr {vgpr}
  .amdhsa_next_free_sgpr {sgpr}
  .amdhsa_accum_offset {min(256, (vgpr+3)//4*4)}
  .amdhsa_group_segment_fixed_size 0
  .amdhsa_kernarg_size 104
  .amdhsa_user_sgpr_count 2
  .amdhsa_user_sgpr_kernarg_segment_ptr 1
  .amdhsa_system_sgpr_workgroup_id_x 1
.end_amdhsa_kernel
"""
def khead(name):
    return f""".globl {name}
.p2align 8
.type {name},@function
{name}:
"""
def vr(b, n=4): return f"v[{b}:{b+n-1}]" if n > 1 else f"v{b}"
def sr(b, n=4): return f"s[{b}:{b+n-1}]" if n > 1 else f"s{b}"
```

```python
import sys, math
from asmlib import *

XN_OFF = 0
OFR = 4 << 20
HFR = 24 << 20
PART = 32 << 20
WS_BYTES = 268435456
MF = "v_mfma_f32_16x16x32_bf16"
CSCALE = (128 ** -0.5) * math.log2(math.e)

import struct
def f32(x): return "0x%08x" % struct.unpack("<I", struct.pack("<f", x))[0]

def srd(a, d, p, nbytes):
    a.I(f"s_mov_b32 s{d}, s{p}"); a.I(f"s_mov_b32 s{d+1}, s{p+1}")
    a.I(f"s_mov_b32 s{d+2}, {nbytes}"); a.I(f"s_mov_b32 s{d+3}, 0x20000")

STAMP = False
OPT = dict(nt_w=0, nt_kv=0, pf_kv=0, pf_w=0, pf_code=0, pf_kv_nt=0)
STAMP_OFF = 200 << 20
def stamp(a, idx, vreg):
    if not STAMP: return
    a.I("s_memrealtime s[98:99]"); a.I("s_memtime s[100:101]")
    a.wait_all(vm=False)
    a.I(f"v_writelane_b32 v{vreg}, s98, {idx}")
    a.I(f"v_writelane_b32 v{vreg}, s100, {idx+16}")
def stamp_store(a, kidx, vreg, srdreg, tmp):
    if not STAMP: return
    a.I(f"v_lshrrev_b32 v{tmp}, 6, v0"); a.I(f"v_readfirstlane_b32 s98, v{tmp}")
    a.I(f"s_lshl_b32 s99, s2, 3"); a.I("s_add_u32 s98, s98, s99"); a.I("s_lshl_b32 s98, s98, 7")
    a.I(f"s_add_u32 s98, s98, {STAMP_OFF + kidx*2048*128}")
    a.I(f"v_and_b32 v{tmp}, 63, v0"); a.I(f"v_lshlrev_b32 v{tmp}, 2, v{tmp}")
    a.I("s_mov_b64 exec, 0xffffffff")
    a.vm(f"buffer_store_dword v{vreg}, v{tmp}, s[{srdreg}:{srdreg+3}], s98 offen")

def allsum64(a, v, t):
    for m in ("quad_perm:[1,0,3,2]", "quad_perm:[2,3,0,1]", "row_half_mirror", "row_mirror"):
        a.I(f"v_add_f32_dpp v{v}, v{v}, v{v} {m} row_mask:0xf bank_mask:0xf")
    for sw in ("v_permlane16_swap_b32", "v_permlane32_swap_b32"):
        a.I(f"v_mov_b32 v{t}, v{v}")
        a.I(f"{sw} v{v}, v{t}")
        a.I(f"v_add_f32 v{v}, v{v}, v{t}")

def rbf(a, d, s):
    a.I(f"v_cvt_pk_bf16_f32 v{d}, v{s}, v{s}")
    a.I(f"v_lshlrev_b32 v{d}, 16, v{d}")

def k0():
    a = Asm()
    a.raw("""
s_cmp_ge_u32 s2, 256
s_cbranch_scc1 L0_end
s_load_dwordx2 s[4:5], s[0:1], 0
s_load_dwordx2 s[6:7], s[0:1], 96
v_lshlrev_b32 v1, 4, v0
s_lshl_b32 s3, s2, 13
s_waitcnt lgkmcnt(0)""")
    srd(a, 8, 4, 2048*1024); srd(a, 12, 6, WS_BYTES)
    stamp(a, 0, 31)
    a.vm("buffer_load_dwordx4 v[4:7], v1, s[8:11], s3 offen", "x")
    a.wait(vm="x")
    for i in range(4):
        a.I(f"v_lshlrev_b32 v{8+2*i}, 16, v{4+i}")
        a.I(f"v_and_b32 v{9+2*i}, 0xffff0000, v{4+i}")
    a.I("v_add_f32 v16, v8, v9")
    for i in range(2, 8): a.I(f"v_add_f32 v16, v16, v{8+i}")
    allsum64(a, 16, 17)
    a.I(f"v_mul_f32 v16, {f32(1/512)}, v16")
    a.I("v_sub_f32 v18, v8, v16"); a.I("v_mul_f32 v19, v18, v18")
    for i in range(1, 8):
        a.I(f"v_sub_f32 v18, v{8+i}, v16"); a.I("v_fmac_f32 v19, v18, v18")
    allsum64(a, 19, 17)
    a.I(f"v_mul_f32 v19, {f32(1/512)}, v19")
    rbf(a, 16, 16); rbf(a, 19, 19)
    a.I(f"v_add_f32 v19, {f32(1e-5)}, v19"); rbf(a, 19, 19)
    a.I("v_sqrt_f32 v19, v19"); rbf(a, 19, 19)
    a.I("v_rcp_f32 v19, v19")
    for i in range(4):
        a.I(f"v_sub_f32 v{8+2*i}, v{8+2*i}, v16"); a.I(f"v_sub_f32 v{9+2*i}, v{9+2*i}, v16")
        a.I(f"v_cvt_pk_bf16_f32 v20, v{8+2*i}, v{9+2*i}")
        a.I(f"v_lshlrev_b32 v21, 16, v20"); a.I("v_and_b32 v22, 0xffff0000, v20")
        a.I("v_mul_f32 v21, v21, v19"); a.I("v_mul_f32 v22, v22, v19")
        a.I(f"v_cvt_pk_bf16_f32 v{4+i}, v21, v22")
    a.vm(f"buffer_store_dwordx4 v[4:7], v1, s[12:15], s3 offen")
    if STAMP: a.wait_all()
    stamp(a, 1, 31); stamp_store(a, 0, 31, 12, 30)
    a.raw("L0_end:\ns_endpgm")
    return a.finalize()

KRING, VRING = 0, 65536
WQRING, NWQ = 24576, 5
W1RING, NW1 = 73728, 3
XRING = 98304

class R1:
    L = 1
    X0 = 2
    WQ = 6; W1 = 7; KD = 8; VD = 9
    XR = 10
    TB = 12
    W1B = 20
    KB = 23
    ST = 27
    T = 28
    POOL = 36
    ACC = 68
    FACC = 132
    XF = 156
    B1 = 188
    QF = 196
    S = 132
    P = 164
    LACC = 180
    ONE = 188

def k1(lead=5, rot=True):
    a = Asm(); r = R1
    a.raw("""
s_cmp_ge_u32 s2, 256
s_cbranch_scc1 L1_end
s_load_dwordx4 s[48:51], s[0:1], 8
s_load_dwordx2 s[52:53], s[0:1], 24
s_load_dwordx4 s[56:59], s[0:1], 48
s_load_dwordx2 s[54:55], s[0:1], 96
s_load_dwordx2 s[4:5], s[0:1], 32
s_load_dwordx2 s[6:7], s[0:1], 64
v_lshrrev_b32 v2, 6, v0
v_and_b32 v1, 63, v0
v_readfirstlane_b32 s36, v2
s_and_b32 s37, s2, 7
s_lshl_b32 s37, s37, 2
s_lshr_b32 s38, s2, 3
s_and_b32 s39, s38, 3
s_add_u32 s37, s37, s39
s_lshr_b32 s38, s38, 2
""")
    if rot:
        a.I("s_lshl_b32 s39, s39, 1"); a.I("s_add_u32 s39, s39, s38"); a.I("s_and_b32 s39, s39, 7")
    else:
        a.I("s_mov_b32 s39, 0")
    L, T = r.L, r.T
    a.raw("""
s_mul_i32 s47, s37, 3
s_lshl_b32 s60, s37, 1
s_add_u32 s60, s60, 22
s_cmp_lt_u32 s37, 22
s_cselect_b32 s47, s47, s60
""")
    a.I("s_lshl_b32 s60, s38, 8"); a.I("s_lshl_b32 s61, s36, 5"); a.I("s_add_u32 s60, s60, s61")
    a.I(f"v_lshrrev_b32 v{T}, 3, v{L}"); a.I(f"v_add_u32 v{T}, s60, v{T}")
    a.I(f"v_lshlrev_b32 v{T}, 10, v{T}")
    a.I(f"v_and_b32 v{T+1}, 7, v{L}"); a.I(f"v_lshrrev_b32 v{T+2}, 4, v{L}")
    a.I(f"v_xor_b32 v{T+1}, v{T+1}, v{T+2}")
    a.I(f"v_lshl_add_u32 v{r.X0}, v{T+1}, 4, v{T}")
    a.I(f"v_xor_b32 v{r.X0+1}, 64, v{r.X0}"); a.I(f"v_add_u32 v{r.X0+1}, 8192, v{r.X0+1}")
    a.I(f"v_add_u32 v{r.X0+2}, 16384, v{r.X0}"); a.I(f"v_add_u32 v{r.X0+3}, 16384, v{r.X0+1}")
    a.I("s_lshl_b32 s61, s36, 2")
    a.I(f"v_add_u32 v{T+3}, s61, v{T+2}")
    a.I(f"v_and_b32 v{T+4}, 15, v{L}")
    a.I(f"v_lshrrev_b32 v{T+5}, 1, v{T+3}"); a.I(f"v_and_b32 v{T+5}, 4, v{T+5}")
    a.I(f"v_or_b32 v{T+5}, v{T+5}, v{T+2}")
    a.I(f"v_lshlrev_b32 v{T+5}, 1, v{T+5}"); a.I(f"v_xor_b32 v{T+5}, v{T+5}, v{T+4}")
    a.I(f"v_lshlrev_b32 v{T+5}, 4, v{T+5}")
    a.I(f"v_lshl_add_u32 v{r.WQ}, v{T+3}, 13, v{T+5}")
    a.I("s_lshl_b32 s61, s37, 8"); a.I(f"v_add_u32 v{r.WQ}, s61, v{r.WQ}")
    a.I(f"v_and_b32 v{T+5}, 15, v{T+3}"); a.I(f"v_xor_b32 v{T+5}, v{T+5}, v{T+4}")
    a.I(f"v_lshlrev_b32 v{T+5}, 4, v{T+5}"); a.I(f"v_lshl_add_u32 v{r.KD}, v{T+3}, 8, v{T+5}")
    a.I(f"v_and_b32 v{T+5}, 7, v{T+3}"); a.I(f"v_lshlrev_b32 v{T+5}, 1, v{T+5}"); a.I(f"v_xor_b32 v{T+5}, v{T+5}, v{T+4}")
    a.I(f"v_lshlrev_b32 v{T+5}, 4, v{T+5}"); a.I(f"v_lshl_add_u32 v{r.VD}, v{T+3}, 8, v{T+5}")
    a.I("s_lshl_b32 s61, s36, 3")
    a.I(f"v_lshrrev_b32 v{T+5}, 3, v{L}"); a.I(f"v_add_u32 v{T+5}, s61, v{T+5}")
    a.I(f"v_and_b32 v{T+6}, 2, v{T+5}")
    a.I(f"v_lshrrev_b32 v{T+7}, 1, v{T+5}"); a.I(f"v_and_b32 v{T+7}, 4, v{T+7}")
    a.I(f"v_or_b32 v{T+6}, v{T+6}, v{T+7}")
    a.I(f"v_and_b32 v{T+7}, 7, v{L}"); a.I(f"v_xor_b32 v{T+6}, v{T+6}, v{T+7}")
    a.I(f"v_lshlrev_b32 v{T+6}, 4, v{T+6}")
    a.I(f"v_mul_u32_u24 v{T+5}, 2752, v{T+5}"); a.I(f"v_add_u32 v{r.W1}, v{T+5}, v{T+6}")
    a.I("s_lshl_b32 s61, s47, 5"); a.I(f"v_add_u32 v{r.W1}, s61, v{r.W1}")
    a.I("s_lshl_b32 s45, s36, 10")
    a.I("s_lshl_b32 s44, s36, 13"); a.I(f"s_add_u32 s44, s44, {XRING}")
    a.I("s_lshl_b32 s46, s37, 19"); a.I(f"s_add_u32 s46, s46, {1536*256}")
    a.I("s_waitcnt lgkmcnt(0)")
    srd(a, 20, 48, 32*2048*256); srd(a, 24, 50, 32*2048*256)
    srd(a, 12, 52, 512*8192); srd(a, 16, 56, 512*2752); srd(a, 32, 58, 2752)
    srd(a, 28, 54, WS_BYTES); srd(a, 8, 54, 2048*1024)

    def piece_sgprs(p, dst):
        a.I(f"s_add_u32 s{dst}, s39, {p}"); a.I(f"s_and_b32 s{dst}, s{dst}, 7")
        a.I(f"s_mul_i32 s{dst+3}, s{dst}, {64*2752}")
        a.I(f"s_lshl_b32 s{dst+1}, s{dst}, 19"); a.I(f"s_add_u32 s{dst+2}, s{dst+1}, {32*8192}")
        a.I(f"s_lshl_b32 s{dst}, s{dst}, 7")
    PS = 64
    for p in range(8): piece_sgprs(p, PS + 4*p)
    def dma_x(p, j):
        a.I(f"s_add_u32 m0, s44, {(p%2)*4096 + j*1024}")
        a.vm(f"buffer_load_dwordx4 v{r.X0+j}, s[8:11], s{PS+4*p} offen lds", ("x", p))
    def dma_wq(s):
        a.I(f"s_add_u32 m0, s45, {WQRING + (s%NWQ)*8192}")
        a.vm(f"buffer_load_dwordx4 v{r.WQ}, s[12:15], s{PS+4*(s//2)+1+(s%2)} offen {'nt ' if OPT['nt_w'] else ''}lds", ("wq", s))
    def dma_w1(p):
        a.I(f"s_add_u32 m0, s45, {W1RING + (p%NW1)*8192}")
        a.vm(f"buffer_load_dwordx4 v{r.W1}, s[16:19], s{PS+4*p+3} offen {'nt ' if OPT['nt_w'] else ''}lds", ("w1", p))
    def dma_kv(which, i):
        base = (KRING if which == "k" else VRING) + (i % 8)*8192
        a.I(f"s_add_u32 s62, s46, {i*8192}")
        a.I(f"s_add_u32 m0, s45, {base}")
        a.vm(f"buffer_load_dwordx4 v{r.KD if which=='k' else r.VD}, {'s[20:23]' if which=='k' else 's[24:27]'}, s62 offen {'nt ' if OPT['nt_kv'] else ''}lds", (which, i))
    stamp(a, 0, 255)
    for j in range(4): dma_x(0, j)
    dma_wq(0); dma_w1(0); dma_wq(1)
    for j in range(4): dma_x(1, j)
    dma_wq(2); dma_wq(3); dma_w1(1); dma_wq(4); dma_w1(2)
    a.I(f"v_lshlrev_b32 v{T}, 3, v{T+2}"); a.I("s_lshl_b32 s61, s47, 5")
    for t in range(3):
        a.vm(f"buffer_load_dwordx2 v[{r.B1+2*t}:{r.B1+2*t+1}], v{T}, s[32:35], s61 offen offset:{32*t}", "b1")
    PFV = 253
    if OPT['pf_code']:
        a.I("s_getpc_b64 s[40:41]")
        a.raw("L1_pc:")
        a.I(f"v_lshlrev_b32 v{PFV}, 7, v0")
        a.I(f"v_cmp_gt_u32 vcc, L_code_end-L1_pc, v{PFV}")
        a.I("s_and_saveexec_b64 s[42:43], vcc")
        a.vm(f"global_load_dword v{PFV-1}, v{PFV}, s[40:41]", "pf")
        a.I("s_mov_b64 exec, s[42:43]")
    if OPT['pf_kv']:
        a.I(f"v_and_b32 v{PFV}, 127, v0"); a.I(f"v_lshlrev_b32 v{PFV}, 7, v{PFV}")
        a.I("s_lshl_b32 s60, s38, 14"); a.I("s_add_u32 s60, s60, s46")
        a.I("s_lshr_b32 s61, s36, 1")
        a.I("s_cmp_eq_u32 s61, 0"); a.I("s_cbranch_scc0 L1_pfa")
        a.raw(f"buffer_load_dword v{PFV-1}, v{PFV}, s[20:23], s60 offen {'nt' if OPT['pf_kv_nt'] else ''}")
        a.raw("L1_pfa:")
        a.I("s_cmp_eq_u32 s61, 1"); a.I("s_cbranch_scc0 L1_pfb")
        a.raw(f"buffer_load_dword v{PFV-1}, v{PFV}, s[24:27], s60 offen {'nt' if OPT['pf_kv_nt'] else ''}")
        a.raw("L1_pfb:")
    a.I(f"v_lshrrev_b32 v{T+5}, 1, v{T+4}"); a.I(f"v_xor_b32 v{T+5}, v{T+5}, v{T+2}")
    a.I(f"v_lshlrev_b32 v{T+5}, 4, v{T+5}"); a.I(f"v_lshl_add_u32 v{T+5}, v{T+4}, 7, v{T+5}")
    a.I(f"v_add_u32 v{r.XR}, s44, v{T+5}"); a.I(f"v_xor_b32 v{r.XR+1}, 64, v{r.XR}")
    a.I(f"v_bfe_u32 v{T+5}, v{L}, 2, 2")
    a.I(f"v_and_b32 v{T+6}, 3, v{L}"); a.I(f"v_lshlrev_b32 v{T+6}, 3, v{T+6}")
    a.I(f"v_and_b32 v{T+7}, 1, v{T+2}")
    a.I(f"v_lshl_add_u32 v{T}, v{T+7}, 2, v{T+5}")
    a.I(f"v_lshl_add_u32 v{T}, v{T}, 5, v{T+6}")
    a.I(f"v_lshl_add_u32 v{T+1}, v{T+2}, 3, v{T+5}")
    a.I(f"v_lshl_add_u32 v{r.TB}, v{T+1}, 8, v{T}")
    for t in range(1, 8): a.I(f"v_xor_b32 v{r.TB+t}, {t*32}, v{r.TB}")
    a.I(f"v_lshrrev_b32 v{T}, 1, v{T+5}"); a.I(f"v_lshl_add_u32 v{T}, v{T+7}, 1, v{T}")
    a.I(f"v_lshl_add_u32 v{T}, v{T}, 5, v{T+6}")
    a.I(f"v_lshl_add_u32 v{T}, v{T+1}, 7, v{T}")
    a.I(f"v_add_u32 v{r.W1B}, {W1RING}, v{T}")
    for t in range(1, 3): a.I(f"v_xor_b32 v{r.W1B+t}, {t*32}, v{r.W1B}")
    a.I(f"v_xor_b32 v{T}, v{T+4}, v{T+2}"); a.I(f"v_lshlrev_b32 v{T}, 4, v{T}")
    a.I(f"v_lshl_add_u32 v{r.KB}, v{T+4}, 8, v{T}")
    for ks in range(1, 4): a.I(f"v_xor_b32 v{r.KB+ks}, {ks*64}, v{r.KB}")
    a.I(f"v_lshlrev_b32 v{r.ST}, 4, v{L}")
    a.I(f"v_lshlrev_b32 v{T+3}, 10, v{T+2}"); a.I(f"v_sub_u32 v{T+3}, {VRING}, v{T+3}")

    NP = 8
    NF = 11
    def pa_reads(n):
        s, t = divmod(n, NF)
        if s >= 16: return
        b = r.POOL + (n % NP)*4
        for rd in range(2):
            if t < 8:
                a.lds(f"ds_read_b64_tr_b16 v[{b+2*rd}:{b+2*rd+1}], v{r.TB+t} offset:{WQRING + (s%NWQ)*8192 + rd*1024}", ("f", n))
            else:
                a.lds(f"ds_read_b64_tr_b16 v[{b+2*rd}:{b+2*rd+1}], v{r.W1B+t-8} offset:{((s//2)%NW1)*8192 + (s%2)*4096 + rd*512}", ("f", n))
    def xf(s, rt): return r.XF + ((s % 4)*2 + rt)*4
    def x_reads(p):
        a.wait(vm=("x", p))
        for e in range(2):
            for rt in range(2):
                b = xf(2*p+e, rt)
                a.lds(f"ds_read_b128 v[{b}:{b+3}], v{r.XR+e} offset:{(p%2)*4096 + rt*2048}", ("xf", 2*p+e))
    x_reads(0)
    a.wait(vm=[("wq", 0), ("w1", 0)])
    a.I("s_barrier")
    stamp(a, 1, 255)
    for n in range(lead): pa_reads(n)
    kv_early = [("k", 0), ("k", 1), ("v", 0), ("k", 2)]
    for s in range(16):
        p = s // 2
        if s in (4, 8, 12): stamp(a, 1 + s//4, 255)
        dmas = []
        pre_dmas = []
        if s % 2 == 0 and p + 2 < 8:
            pre_dmas += [(lambda j=j, p=p: dma_x(p+2, j)) for j in range(4)] if p >= 0 else []
        if s >= 1 and s + 4 < 16: dmas.append(lambda s=s: dma_wq(s+4))
        if s % 2 == 0 and p >= 1 and p + 2 < 8: dmas.append(lambda p=p: dma_w1(p+2))
        if s >= 11 and kv_early and s % 2 == 1:
            x = kv_early.pop(0); dmas.append(lambda x=x: dma_kv(*x))
            if s >= 13 and kv_early:
                x = kv_early.pop(0); dmas.append(lambda x=x: dma_kv(*x))
        for t in range(NF):
            n = s*NF + t
            b = r.POOL + (n % NP)*4
            a.wait(lg=[("f", n), ("xf", s)])
            for rt in range(2):
                d = (r.ACC + (t*2 + rt)*4) if t < 8 else (r.FACC + ((t-8)*2 + rt)*4)
                c = "0" if s == 0 else vr(d)
                a.I(f"{MF} {vr(d)}, {vr(b)}, {vr(xf(s, rt))}, {c}")
                if rt == 0 and pre_dmas and t < 5: pre_dmas.pop(0)()
            if t == NF - lead - 1 and s < 15:
                tags = [("wq", s+1), ("w1", (s+1)//2)]
                a.wait(vm=tags)
                a.I("s_barrier")
            pa_reads(n + lead)
            if t > NF - lead - 1 and dmas: dmas.pop(0)()
            if s % 2 == 1 and t == 2 and p + 1 < 8: x_reads(p + 1)
        assert not dmas and not pre_dmas, (s, dmas, pre_dmas)
    assert not kv_early
    stamp(a, 5, 255)
    a.I(f"s_mov_b32 s60, {f32(CSCALE)}")
    for rt in range(2):
        for ks in range(4):
            q = r.QF + (rt*4 + ks)*4
            for hh in range(2):
                d = r.ACC + ((2*ks+hh)*2 + rt)*4
                for i in range(4): a.I(f"v_mul_f32 v{d+i}, s60, v{d+i}")
                a.I(f"v_cvt_pk_bf16_f32 v{q+2*hh}, v{d}, v{d+1}")
                a.I(f"v_cvt_pk_bf16_f32 v{q+2*hh+1}, v{d+2}, v{d+3}")
    for rt in range(2):
        for ks in range(4):
            q = r.QF + (rt*4 + ks)*4
            for i in range(2): a.I(f"v_permlane32_swap_b32 v{q+i}, v{q+2+i}")
    for rt in range(2):
        for ks in range(4):
            q = r.QF + (rt*4 + ks)*4
            for i in range(2): a.I(f"v_permlane16_swap_b32 v{q+i}, v{q+2+i}")
    a.wait(vm=[("k", 0), ("k", 1), "b1"])
    a.I("s_barrier")
    for t in range(8): a.I(f"v_add_u32 v{r.TB+t}, v{T+3}, v{r.TB+t}")
    a.I("s_lshl_b32 s60, s38, 4"); a.I("s_lshl_b32 s61, s36, 1"); a.I("s_add_u32 s60, s60, s61")
    a.I(f"s_mul_i32 s61, s60, {43*1024}"); a.I(f"s_add_u32 s61, s61, {HFR}")
    a.I(f"s_lshl_b32 s63, s60, 17"); a.I("s_lshl_b32 s96, s37, 12"); a.I("s_add_u32 s63, s63, s96"); a.I(f"s_add_u32 s63, s63, {OFR}")
    for t in range(3):
        if t == 2:
            a.I("s_cmp_ge_u32 s37, 22"); a.I("s_cbranch_scc1 L1_skipH")
        a.I(f"s_add_u32 s96, s47, {t}"); a.I("s_lshr_b32 s97, s96, 1"); a.I("s_lshl_b32 s97, s97, 10")
        a.I("s_and_b32 s96, s96, 1"); a.I("s_lshl_b32 s96, s96, 3"); a.I("s_add_u32 s96, s96, s97"); a.I("s_add_u32 s96, s96, s61")
        a.I(f"s_add_u32 s97, s96, {43*1024}")
        bb = r.B1 + 2*t
        a.I(f"v_lshlrev_b32 v{T}, 16, v{bb}"); a.I(f"v_and_b32 v{T+1}, 0xffff0000, v{bb}")
        a.I(f"v_lshlrev_b32 v{T+4}, 16, v{bb+1}"); a.I(f"v_and_b32 v{T+5}, 0xffff0000, v{bb+1}")
        bias = [T, T+1, T+4, T+5]
        for rt in range(2):
            d = r.FACC + (t*2 + rt)*4
            for i in range(4): a.I(f"v_add_f32 v{d+i}, v{d+i}, v{bias[i]}")
            for i in range(4): a.I(f"v_max_f32 v{d+i}, 0, v{d+i}")
            for i in range(4): a.I(f"v_mul_f32 v{d+i}, v{d+i}, v{d+i}")
            a.I(f"v_cvt_pk_bf16_f32 v{d}, v{d}, v{d+1}"); a.I(f"v_cvt_pk_bf16_f32 v{d+1}, v{d+2}, v{d+3}")
            ins = f"buffer_store_dwordx2 v[{d}:{d+1}], v{r.ST}, s[28:31], s{96+rt} offen"
            if t < 2: a.vm(ins, "hst")
            else: a.raw(ins)
    a.raw("L1_skipH:")
    for x in [("k", 3), ("v", 1), ("k", 4), ("v", 2)]: dma_kv(*x)
    for i in range(4): a.I(f"v_mov_b32 v{r.ONE+i}, 0x3f803f80")
    stamp(a, 6, 255)
    leadb = 6
    seq = []
    seq += [("k", 0, j) for j in range(8)]
    for i in range(17):
        if i + 1 < 16: seq += [("k", i+1, j) for j in range(8)]
        if i >= 1: seq += [("v", i-1, j) for j in range(8)]
    def pb_reads(n):
        if n >= len(seq): return
        kind, i, j = seq[n]
        b = r.POOL + (n % NP)*4
        if kind == "k":
            a.lds(f"ds_read_b128 {vr(b)}, v{r.KB + j%4} offset:{KRING + (i%8)*8192 + (j//4)*4096}", ("g", n))
        else:
            for rd in range(2):
                a.lds(f"ds_read_b64_tr_b16 v[{b+2*rd}:{b+2*rd+1}], v{r.TB+j} offset:{(i%8)*8192 + rd*4096}", ("g", n))
    def Sreg(i, rt, kt): return r.S + (i % 2)*16 + (rt*2 + kt)*4
    def Preg(i, rt): return r.P + (i % 2)*8 + rt*4
    def softmax_ops(i):
        ops = []
        sb = r.S + (i % 2)*16; pb = r.P + (i % 2)*8
        for k in range(16):
            ops.append(f"v_exp_f32 v{sb+k}, v{sb+k}")
            if k >= 2 and k % 2 == 0: ops.append(f"v_cvt_pk_bf16_f32 v{pb+(k-2)//2}, v{sb+k-2}, v{sb+k-1}")
        ops.append(f"v_cvt_pk_bf16_f32 v{pb+7}, v{sb+14}, v{sb+15}")
        return ops
    guarded = {("k", 0), ("k", 1)}
    for n in range(leadb): pb_reads(n)
    n = 0
    steps = [(-1, [seq[j] for j in range(8)])]
    pos = 8
    for i in range(17):
        cnt = (8 if i + 1 < 16 else 0) + (8 if i >= 1 else 0)
        steps.append((i, seq[pos:pos+cnt])); pos += cnt
    for (i, frs) in steps:
        if i in (4, 8, 12): stamp(a, 6 + i//4, 255)
        if i == 2 and OPT['pf_w']:
            a.I("s_and_b32 s60, s2, 7"); a.I("s_lshr_b32 s60, s60, 1")
            a.I("s_cmp_eq_u32 s60, 3")
            a.I("s_cselect_b32 s8, s6, s4"); a.I("s_cselect_b32 s9, s7, s5")
            a.I(f"s_mov_b32 s10, {4096*1024}"); a.I(f"s_cselect_b32 s10, {1376*1024}, s10"); a.I("s_mov_b32 s11, 0x20000")
            a.I(f"s_mul_i32 s60, s60, {43*32768}"); a.I("s_cselect_b32 s60, 0, s60")
            a.I("s_lshr_b32 s61, s2, 3"); a.I(f"s_mul_i32 s61, s61, {43*1024}"); a.I("s_add_u32 s60, s60, s61")
            a.I(f"v_lshlrev_b32 v253, 7, v0")
            a.I(f"v_cmp_gt_u32 vcc, {43*1024}, v253"); a.I(f"v_cndmask_b32 v253, -1, v253, vcc")
            a.vm(f"buffer_load_dword v252, v253, s[8:11], s60 offen", "pf")
        valu = softmax_ops(i) if 0 <= i < 16 else []
        nm = 2*len(frs) + (2 if i >= 1 else 0)
        cost = lambda s: 2.0 if "v_exp" in s else 1.0
        tot = sum(cost(v) for v in valu); acc = 0.0; mi = 0
        dm = []
        if 0 <= i:
            if i + 5 < 16: dm.append(("k", i+5))
            if i + 3 < 16: dm.append(("v", i+3))
        def fill():
            nonlocal acc, mi
            mi += 1
            while valu and (acc + cost(valu[0])/2 <= tot*mi/nm):
                v = valu.pop(0); acc += cost(v); a.I(v)
        for fi, (kind, ii, j) in enumerate(frs):
            b = r.POOL + (n % NP)*4
            a.wait(lg=("g", n))
            for rt in range(2):
                if kind == "k":
                    kt, ks = j // 4, j % 4
                    d = Sreg(ii, rt, kt)
                    a.I(f"{MF} {vr(d)}, {vr(b)}, {vr(r.QF + (rt*4+ks)*4)}, {'0' if ks == 0 else vr(d)}")
                else:
                    d = r.ACC + (j*2 + rt)*4
                    a.I(f"{MF} {vr(d)}, {vr(b)}, {vr(Preg(ii, rt))}, {'0' if ii == 0 else vr(d)}")
                if rt == 0: fill()
            nn = n + leadb
            if nn < len(seq) and seq[nn][:2] not in guarded:
                k2, i2, _ = seq[nn]
                if k2 == "k":
                    tags = [("k", i2)] + ([("v", i2-2)] if i2 >= 2 else [])
                else:
                    tags = [("v", i2)]
                a.wait(vm=tags); a.I("s_barrier")
                for tg in tags: guarded.add(tg)
            pb_reads(nn)
            if dm and fi in (2, 5): dma_kv(*dm.pop(0))
            fill()
            if kind == "v" and j == 3:
                for rt in range(2):
                    l = r.LACC + rt*4
                    a.I(f"{MF} {vr(l)}, {vr(r.ONE)}, {vr(Preg(ii, rt))}, {'0' if ii == 0 else vr(l)}")
                    fill()
            n += 1
        while valu: a.I(valu.pop(0))
        assert not dm, (i, dm)
    stamp(a, 10, 255)
    for rt in range(2): a.I(f"v_rcp_f32 v{T+rt}, v{r.LACC+rt*4}")
    for rt in range(2):
        for ks in range(4):
            o = r.QF + (rt*4 + ks)*4
            for hh in range(2):
                d = r.ACC + ((2*ks+hh)*2 + rt)*4
                for i in range(4): a.I(f"v_mul_f32 v{d+i}, v{T+rt}, v{d+i}")
                a.I(f"v_cvt_pk_bf16_f32 v{o+2*hh}, v{d}, v{d+1}")
                a.I(f"v_cvt_pk_bf16_f32 v{o+2*hh+1}, v{d+2}, v{d+3}")
            if ks == 0 and rt == 1: a.I(f"s_add_u32 s63, s63, {128*1024}")
            a.vm(f"buffer_store_dwordx4 {vr(o)}, v{r.ST}, s[28:31], s63 offen offset:{ks*1024}")
    stamp(a, 11, 255)
    if STAMP: a.wait_all()
    stamp(a, 12, 255); stamp_store(a, 1, 255, 28, 254)
    a.raw("L1_end:\ns_endpgm")
    return a.finalize(), a

class R2:
    L = 1; WD = 2; BD = 3; ST = 4; T = 6
    TB = 16
    POOL = 32
    ACC = 64
    BF = 128
NSLOT2 = 8
NB2 = 8
def k2_common(a):
    a.raw("""
v_lshrrev_b32 v2, 6, v0
v_and_b32 v1, 63, v0
v_readfirstlane_b32 s36, v2
s_and_b32 s37, s2, 7
s_lshr_b32 s38, s37, 1
s_and_b32 s37, s37, 1
s_lshl_b32 s37, s37, 3
s_lshr_b32 s39, s2, 3
s_lshr_b32 s40, s39, 2
s_add_u32 s37, s37, s40
s_and_b32 s39, s39, 3
""")

def k2(lead=5):
    a = Asm(); r = R2; L, T = r.L, r.T
    a.raw("""
s_cmp_ge_u32 s2, 256
s_cbranch_scc1 L2_end
s_load_dwordx2 s[48:49], s[0:1], 32
s_load_dwordx2 s[50:51], s[0:1], 64
s_load_dwordx2 s[54:55], s[0:1], 96
""")
    k2_common(a)
    a.raw("""
s_lshr_b32 s41, s36, 2
s_and_b32 s42, s36, 3
s_lshl_b32 s45, s36, 10
""")
    a.I(f"v_lshrrev_b32 v{T+2}, 4, v{L}"); a.I(f"v_and_b32 v{T+4}, 15, v{L}")
    a.I("s_lshl_b32 s61, s36, 2"); a.I(f"v_add_u32 v{T+3}, s61, v{T+2}")
    a.I(f"v_and_b32 v{T+5}, 7, v{T+3}"); a.I(f"v_lshlrev_b32 v{T+5}, 1, v{T+5}"); a.I(f"v_xor_b32 v{T+5}, v{T+5}, v{T+4}")
    a.I(f"v_lshlrev_b32 v{T+5}, 4, v{T+5}"); a.I(f"v_lshl_add_u32 v{r.WD}, v{T+3}, 10, v{T+5}")
    a.I("s_lshl_b32 s61, s39, 8"); a.I(f"v_add_u32 v{r.WD}, s61, v{r.WD}")
    a.I(f"v_lshlrev_b32 v{r.ST}, 4, v{L}")
    a.raw(f"""
s_mul_i32 s43, s38, {43*32768}
s_lshl_b32 s60, s37, 3
s_lshl_b32 s61, s42, 1
s_add_u32 s60, s60, s61
s_lshl_b32 s44, s60, 7
s_mul_i32 s61, s38, 43
s_add_u32 s44, s44, s61
s_add_u32 s44, s44, s41
s_lshl_b32 s44, s44, 10
s_add_u32 s44, s44, {OFR}
s_mul_i32 s61, s60, 43
s_add_u32 s61, s61, s41
s_lshl_b32 s61, s61, 10
s_add_u32 s61, s61, {HFR}
s_mov_b32 s46, {128*1024}
s_cmp_eq_u32 s38, 3
s_cselect_b32 s43, 0, s43
s_cselect_b32 s44, s61, s44
s_cselect_b32 s46, {43*1024}, s46
s_add_u32 s46, s46, s44
s_waitcnt lgkmcnt(0)
s_mov_b32 s14, {4096*1024}
s_cmp_eq_u32 s38, 3
s_cselect_b32 s12, s50, s48
s_cselect_b32 s13, s51, s49
s_cselect_b32 s14, {1376*1024}, s14
s_mov_b32 s15, 0x20000
""")
    srd(a, 28, 54, WS_BYTES)
    NI = 22
    def dma_w(t, e):
        a.I(f"s_add_u32 s62, s43, {(2*t+e)*32768}")
        a.I(f"s_add_u32 m0, s45, {(t%NSLOT2)*16384 + e*8192}")
        a.vm(f"buffer_load_dwordx4 v{r.WD}, s[12:15], s62 offen lds", ("w", t))
    def bf(t, rt): return r.BF + ((t % NB2)*2 + rt)*4
    def load_b(t, rt):
        tt = min(t, 20)
        a.I(f"s_add_u32 s62, s{44 if rt == 0 else 46}, {t*2048}")
        a.vm(f"buffer_load_dwordx4 {vr(bf(t, rt))}, v{r.ST}, s[28:31], s62 offen", ("b", t))
    DEP = 6
    stamp(a, 0, 255)
    for t in range(DEP):
        dma_w(t, 0); load_b(t, 0); dma_w(t, 1); load_b(t, 1)
    a.I(f"v_bfe_u32 v{T+5}, v{L}, 2, 2")
    a.I(f"v_lshl_add_u32 v{T+1}, v{T+2}, 2, v{T+5}")
    a.I(f"v_and_b32 v{T}, 7, v{T+1}")
    a.I("s_lshl_b32 s60, s41, 2"); a.I(f"v_xor_b32 v{T}, s60, v{T}")
    a.I(f"v_and_b32 v{T+6}, 3, v{L}"); a.I(f"v_lshlrev_b32 v{T+6}, 3, v{T+6}")
    a.I(f"v_lshl_add_u32 v{T}, v{T}, 5, v{T+6}")
    a.I(f"v_lshl_add_u32 v{T}, v{T+1}, 8, v{T}")
    a.I("s_lshl_b32 s60, s41, 13"); a.I(f"v_add_u32 v{r.TB}, s60, v{T}")
    for t in range(1, 8): a.I(f"v_xor_b32 v{r.TB+t}, {t*32}, v{r.TB}")
    for t in range(8): a.I(f"v_add_u32 v{r.TB+8+t}, 0x10000, v{r.TB+t}")
    a.raw("""
s_cmp_lg_u32 s38, 2
s_cselect_b32 s47, 1, 0
s_cmp_eq_u32 s41, 0
s_cselect_b32 s47, s47, 0
""")
    NP = 8
    def reads(n):
        t, T_ = divmod(n, 8)
        if t >= NI: return
        b = r.POOL + (n % NP)*4
        sl = t % NSLOT2
        for rd in range(2):
            a.lds(f"ds_read_b64_tr_b16 v[{b+2*rd}:{b+2*rd+1}], v{r.TB + 8*(sl//4) + T_} offset:{(sl%4)*16384 + rd*4096}", ("f", n))
    a.wait(vm=("w", 0)); a.I("s_barrier")
    stamp(a, 1, 255)
    for n in range(lead): reads(n)
    for t in range(NI):
        if t == NI - 1:
            a.wait(vm=("b", t)); a.wait_all(vm=False)
            a.I("s_cmp_eq_u32 s47, 0"); a.I("s_cbranch_scc1 L2_skip")
        if t in (5, 10, 15, 20): stamp(a, 1 + t//5, 255)
        todo = []
        if t + DEP < NI: todo = [lambda: dma_w(t+DEP, 0), lambda: load_b(t+DEP, 0), lambda: dma_w(t+DEP, 1), lambda: load_b(t+DEP, 1)]
        for T_ in range(8):
            n = t*8 + T_
            b = r.POOL + (n % NP)*4
            a.wait(vm=("b", t), lg=("f", n))
            for rt in range(2):
                d = r.ACC + (T_*2 + rt)*4
                a.I(f"{MF} {vr(d)}, {vr(b)}, {vr(bf(t, rt))}, {'0' if t == 0 else vr(d)}")
            if T_ == 8 - lead - 1 and t + 1 < NI:
                a.wait(vm=("w", t+1)); a.I("s_barrier")
            reads(n + lead)
            if T_ >= 8 - lead - 1 and todo: todo.pop(0)()
        assert not todo
    a.raw("L2_skip:")
    a.wait_all()
    a.I("s_barrier")
    stamp(a, 6, 255)
    a.I("s_lshl_b32 s60, s36, 13"); a.I(f"v_add_u32 v{T}, s60, v{r.ST}")
    a.I("s_xor_b32 s60, s60, 0x8000"); a.I(f"v_add_u32 v{T+1}, s60, v{r.ST}")
    for k in range(8):
        a.lds(f"ds_write_b128 v{T}, {vr(r.ACC + 32 + k*4)} offset:{k*1024}", "pw")
    a.wait(lg="pw"); a.I("s_barrier")
    for k in range(8):
        a.lds(f"ds_read_b128 {vr(r.POOL + k*4)}, v{T+1} offset:{k*1024}", ("pr", k))
    a.raw(f"""
s_lshl_b32 s60, s37, 2
s_add_u32 s60, s60, s39
s_lshl_b32 s60, s60, 4
s_add_u32 s60, s60, s38
s_lshl_b32 s60, s60, 13
s_add_u32 s60, s60, s45
s_add_u32 s60, s60, {PART}
""")
    for k in range(8):
        a.wait(lg=("pr", k))
        for i in range(4): a.I(f"v_add_f32 v{r.ACC+k*4+i}, v{r.ACC+k*4+i}, v{r.POOL+k*4+i}")
    for jj in range(4):
        o = r.BF + jj*4
        for hh in range(2):
            d = r.ACC + ((2*(jj//2) + hh)*2 + jj % 2)*4
            a.I(f"v_cvt_pk_bf16_f32 v{o+2*hh}, v{d}, v{d+1}"); a.I(f"v_cvt_pk_bf16_f32 v{o+2*hh+1}, v{d+2}, v{d+3}")
        a.vm(f"buffer_store_dwordx4 {vr(o)}, v{r.ST}, s[28:31], s60 offen")
        a.I(f"s_add_u32 s60, s60, {4*8192}")
    stamp(a, 7, 255)
    if STAMP: a.wait_all()
    stamp(a, 8, 255); stamp_store(a, 2, 255, 28, 254)
    a.raw("L2_end:\ns_endpgm")
    return a.finalize(), a

def k3():
    a = Asm()
    a.raw("""
s_cmp_ge_u32 s2, 256
s_cbranch_scc1 L3_end
s_load_dwordx2 s[48:49], s[0:1], 0
s_load_dwordx4 s[52:55], s[0:1], 72
s_load_dwordx2 s[56:57], s[0:1], 96
""")
    k2_common(a)
    a.raw(f"""
s_lshr_b32 s41, s36, 2
s_and_b32 s42, s36, 3
s_lshl_b32 s60, s37, 2
s_add_u32 s60, s60, s39
s_lshl_b32 s60, s60, 2
s_add_u32 s60, s60, s38
s_lshl_b32 s60, s60, 15
s_lshl_b32 s61, s36, 10
s_add_u32 s60, s60, s61
s_add_u32 s60, s60, {PART}
s_lshl_b32 s43, s37, 7
s_lshl_b32 s61, s42, 5
s_add_u32 s43, s43, s61
s_and_b32 s61, s38, 1
s_lshl_b32 s61, s61, 4
s_add_u32 s43, s43, s61
s_lshl_b32 s44, s39, 7
s_lshl_b32 s61, s41, 6
s_add_u32 s44, s44, s61
s_lshr_b32 s61, s38, 1
s_lshl_b32 s61, s61, 5
s_add_u32 s44, s44, s61
s_lshl_b32 s44, s44, 1
s_lshl_b32 s43, s43, 10
s_add_u32 s43, s43, s44
v_lshlrev_b32 v4, 4, v1
v_and_b32 v5, 15, v1
v_lshrrev_b32 v6, 4, v1
v_lshlrev_b32 v7, 4, v6
v_lshl_add_u32 v5, v5, 10, v7
v_lshlrev_b32 v7, 3, v6
s_waitcnt lgkmcnt(0)
""")
    srd(a, 8, 48, 2048*1024); srd(a, 12, 52, 1024); srd(a, 16, 54, 2048*1024); srd(a, 28, 56, WS_BYTES)
    stamp(a, 0, 63)
    for s in range(4):
        a.vm(f"buffer_load_dwordx4 {vr(16+4*s)}, v4, s[28:31], s60 offen", "p")
        a.I("s_add_u32 s60, s60, 8192")
    a.vm("buffer_load_dwordx4 v[32:35], v5, s[8:11], s43 offen", "p")
    a.vm("buffer_load_dwordx2 v[36:37], v7, s[12:15], s44 offen", "p")
    a.vm("buffer_load_dwordx2 v[38:39], v7, s[12:15], s44 offen offset:32", "p")
    a.wait(vm="p")
    final_math(a, P=[16, 20, 24], F=28, X=32, B=36, T=40)
    a.vm("buffer_store_dwordx4 v[32:35], v5, s[16:19], s43 offen")
    if STAMP: a.wait_all()
    stamp(a, 1, 63); stamp_store(a, 3, 63, 28, 62)
    a.raw("L3_end:\ns_endpgm")
    return a.finalize()

def final_math(a, P, F, X, B, T):
    for i in range(2): a.I(f"v_permlane16_swap_b32 v{X+i}, v{X+2+i}")
    for i in range(2): a.I(f"v_permlane32_swap_b32 v{X+i}, v{X+2+i}")
    def unpack(d, s, hi):
        a.I(f"v_and_b32 v{d}, 0xffff0000, v{s}" if hi else f"v_lshlrev_b32 v{d}, 16, v{s}")
    for i in range(4):
        res = []
        for hi in range(2):
            s_, t1, t2, g_ = T + 4*hi, T + 4*hi + 1, T + 4*hi + 2, T + 4*hi + 3
            unpack(s_, P[0]+i, hi)
            for p in P[1:]:
                unpack(t1, p+i, hi); a.I(f"v_add_f32 v{s_}, v{s_}, v{t1}")
            rbf(a, s_, s_)
            unpack(g_, F+i, hi); unpack(t1, B+i, hi)
            a.I(f"v_add_f32 v{g_}, v{g_}, v{t1}"); rbf(a, g_, g_)
            a.I(f"v_mul_f32 v{t1}, {f32(-math.log2(math.e))}, v{g_}")
            a.I(f"v_exp_f32 v{t1}, v{t1}"); a.I(f"v_add_f32 v{t1}, 1.0, v{t1}")
            a.I(f"v_rcp_f32 v{t1}, v{t1}"); a.I(f"v_mul_f32 v{g_}, v{g_}, v{t1}"); rbf(a, g_, g_)
            a.I(f"v_mul_f32 v{s_}, v{s_}, v{g_}"); rbf(a, s_, s_)
            unpack(t1, X+i, hi); a.I(f"v_add_f32 v{s_}, v{s_}, v{t1}")
        a.I(f"v_cvt_pk_bf16_f32 v{X+i}, v{T}, v{T+4}")
    for i in range(2): a.I(f"v_permlane32_swap_b32 v{X+i}, v{X+2+i}")
    for i in range(2): a.I(f"v_permlane16_swap_b32 v{X+i}, v{X+2+i}")

def build():
    o = """; generated by gen/kern.py
; @launch kernel=ln_kernel grid=(256,1,1) block=(512,1,1) lds=0
; @launch kernel=attn_kernel grid=(256,1,1) block=(512,1,1) lds=163840
; @launch kernel=gemm_kernel grid=(256,1,1) block=(512,1,1) lds=131072
; @launch kernel=fin_kernel grid=(256,1,1) block=(512,1,1) lds=0
.amdgcn_target "amdgcn-amd-amdhsa--gfx950"
.text
"""
    o += khead("ln_kernel") + k0()
    t, a1 = k1(); o += khead("attn_kernel") + t
    t, a2 = k2(); o += khead("gemm_kernel") + t
    o += khead("fin_kernel") + k3() + "L_code_end:\n"
    o += '.section .rodata,"a"\n' + kd("ln_kernel", 32) + kd("attn_kernel") + kd("gemm_kernel") + kd("fin_kernel", 64)
    print("nops added:", a1.nops_added, a2.nops_added, file=sys.stderr)
    return o
if __name__ == "__main__":
    if "--stamp" in sys.argv: STAMP = True
    for x in sys.argv[2:]:
        if "=" in x:
            k, v = x.split("="); OPT[k] = int(v)
    open(sys.argv[1], "w").write(build())
```

```python
import sys, math, struct
from asmlib import *
import kern
from kern import f32, srd, allsum64, rbf, MF, CSCALE, XN_OFF, OFR, HFR, PART, WS_BYTES

OPT = dict(stamp=0, nt_w=1, nt_kv=0, pf_kv=-1, pf_w=1, pf_ws=2, k2_init=3, rot=7, rotm=2, nt_x=0, burst=1, poll_sleep=2, xb_at=17, pf_code=1, pf_kv_nt=0, k2_dep=4, k2_bar=1, pb_bar=1, fill_at=1, wg2=0)
STAMP_OFF = 200 << 20
def stamp(a, idx, vreg=255):
    if not OPT["stamp"]: return
    a.I("s_memrealtime s[98:99]"); a.I("s_memtime s[100:101]")
    a.wait_all(vm=False)
    a.I(f"v_writelane_b32 v{vreg}, s98, {idx}")
    a.I(f"v_writelane_b32 v{vreg}, s100, {idx+16}")
def stamp_store(a, kidx, srdreg, vreg=255, tmp=254):
    if not OPT["stamp"]: return
    a.I(f"v_lshrrev_b32 v{tmp}, 6, v0"); a.I(f"v_readfirstlane_b32 s98, v{tmp}")
    a.I(f"s_lshl_b32 s99, s2, 3"); a.I("s_add_u32 s98, s98, s99"); a.I("s_lshl_b32 s98, s98, 7")
    a.I(f"s_add_u32 s98, s98, {STAMP_OFF + kidx*2048*128}")
    a.I(f"v_and_b32 v{tmp}, 63, v0"); a.I(f"v_lshlrev_b32 v{tmp}, 2, v{tmp}")
    a.I("s_mov_b64 exec, 0xffffffff")
    a.vm(f"buffer_store_dword v{vreg}, v{tmp}, s[{srdreg}:{srdreg+3}], s98 offen")

class Sync:
    def __init__(self, a):
        self.a = a; self.ready = set(); self.free = set(); self.occ = {}; self.reads = {}; self.nreads = {}; self.issued = []
    def dma(self, chunk, slots):
        for s in slots:
            prev = self.occ.get(s)
            assert prev is None or prev == chunk or prev in self.free, ("slot not free", chunk, s, prev)
            self.occ[s] = chunk
        if chunk not in self.issued: self.issued.append(chunk)
    def expect(self, chunk, n): self.nreads[chunk] = n
    def read(self, chunk, tag, private=False):
        if private: assert self.a.vm_is_done(chunk), ("private chunk not waited", chunk)
        else: assert chunk in self.ready, ("chunk not ready", chunk)
        self.reads.setdefault(chunk, []).append(tag)
    def reads_done(self, c):
        rs = self.reads.get(c, [])
        return len(rs) >= self.nreads.get(c, 10**9) and all(self.a.lg_is_done(t) for t in rs)
    def private_free(self, c):
        assert self.reads_done(c), ("private chunk reads not done", c)
        self.free.add(c)
    def barrier(self):
        self.a.I("s_barrier")
        for c in self.issued:
            if self.a.vm_is_done(c): self.ready.add(c)
            if self.reads_done(c): self.free.add(c)

class Stream:
    def __init__(self, a):
        self.a = a; self.m = []; self.gap = []
    def mfma(self, text, lg=None, vm=None):
        self.m.append((text, lg, vm)); self.gap.append([]); return len(self.m) - 1
    def put(self, i, fn, kind="x"):
        if i < 0: self.pre.append((kind, fn))
        else: self.gap[i].append((kind, fn))
    pre = None
    def start(self): self.pre = []
    def has(self, i, kind): return any(k == kind for k, _ in self.gap[i])
    def emit(self):
        order = {"bar": 0, "ds": 1, "salu": 2, "vm": 3, "valu": 4, "x": 5}
        for k, f in (self.pre or []): f()
        for i, (t, lg, vm) in enumerate(self.m):
            self.a.wait(vm=vm, lg=lg)
            self.a.I(t)
            for k, f in sorted(self.gap[i], key=lambda x: order[x[0]]): f()
    def spread_valu(self, ops, lo, hi, cost=None):
        cost = cost or (lambda s: 2.0 if s.startswith("v_exp") or s.startswith("v_rcp") else 1.0)
        tot = sum(cost(o) for o in ops); acc = 0.0; k = 0; n = hi - lo
        for g in range(lo, hi):
            tgt = tot*(g - lo + 1)/n
            while k < len(ops) and (acc + cost(ops[k])/2 <= tgt or g == hi - 1):
                self.put(g, (lambda t=ops[k]: self.a.I(t)), "valu"); acc += cost(ops[k]); k += 1

class R2:
    L = 1; WD = 2; ST = 4; XO = 5; T = 6
    TB = 16
    POOL = 32
    ACC = 64
    BF = 128
    XB = 192
NSLOT2 = 8
NB2 = 8

def k2(lead=5):
    a = Asm(); r = R2; L, T = r.L, r.T; sy = Sync(a)
    a.raw("""
s_cmp_ge_u32 s2, 256
s_cbranch_scc1 L2_end
s_load_dwordx2 s[48:49], s[0:1], 32
s_load_dwordx2 s[50:51], s[0:1], 64
s_load_dwordx2 s[54:55], s[0:1], 96
s_load_dwordx2 s[56:57], s[0:1], 0
s_load_dwordx4 s[64:67], s[0:1], 72
""")
    kern.k2_common(a)
    a.raw("""
s_lshr_b32 s41, s36, 2
s_and_b32 s42, s36, 3
s_lshl_b32 s45, s36, 10
""")
    a.I(f"v_lshrrev_b32 v{T+2}, 4, v{L}"); a.I(f"v_and_b32 v{T+4}, 15, v{L}")
    a.I("s_lshl_b32 s61, s36, 2"); a.I(f"v_add_u32 v{T+3}, s61, v{T+2}")
    a.I(f"v_and_b32 v{T+5}, 7, v{T+3}"); a.I(f"v_lshlrev_b32 v{T+5}, 1, v{T+5}"); a.I(f"v_xor_b32 v{T+5}, v{T+5}, v{T+4}")
    a.I(f"v_lshlrev_b32 v{T+5}, 4, v{T+5}"); a.I(f"v_lshl_add_u32 v{r.WD}, v{T+3}, 10, v{T+5}")
    a.I("s_lshl_b32 s61, s39, 8"); a.I(f"v_add_u32 v{r.WD}, s61, v{r.WD}")
    a.I(f"v_lshlrev_b32 v{r.ST}, 4, v{L}")
    a.raw(f"""
s_mul_i32 s43, s38, {43*32768}
s_lshl_b32 s60, s37, 3
s_lshl_b32 s61, s42, 1
s_add_u32 s60, s60, s61
s_lshl_b32 s44, s60, 7
s_mul_i32 s61, s38, 43
s_add_u32 s44, s44, s61
s_add_u32 s44, s44, s41
s_lshl_b32 s44, s44, 10
s_add_u32 s44, s44, {OFR}
s_mul_i32 s61, s60, 43
s_add_u32 s61, s61, s41
s_lshl_b32 s61, s61, 10
s_add_u32 s61, s61, {HFR}
s_mov_b32 s46, {128*1024}
s_cmp_eq_u32 s38, 3
s_cselect_b32 s43, 0, s43
s_cselect_b32 s44, s61, s44
s_cselect_b32 s46, {43*1024}, s46
s_add_u32 s46, s46, s44
s_mov_b32 s14, {4096*1024}
s_mov_b32 s15, 0x20000
s_cmp_eq_u32 s38, 3
s_cselect_b32 s14, {1376*1024}, s14
s_waitcnt lgkmcnt(0)
s_cselect_b32 s12, s50, s48
s_cselect_b32 s13, s51, s49
""")
    srd(a, 28, 54, WS_BYTES)
    NI = 22
    cnt = [0]
    def dma_w(t, e):
        sg = 62 + cnt[0] % 2; cnt[0] += 1
        def s():
            a.I(f"s_add_u32 s{sg}, s43, {(2*t+e)*32768}")
            a.I(f"s_add_u32 m0, s45, {(t%NSLOT2)*16384 + e*8192}")
        def v():
            sy.dma(("w", t), [t % NSLOT2])
            a.vm(f"buffer_load_dwordx4 v{r.WD}, s[12:15], s{sg} offen lds", ("w", t))
        return s, v
    def bf(t, rt): return r.BF + ((t % NB2)*2 + rt)*4
    def load_b(t, rt):
        sg = 62 + cnt[0] % 2; cnt[0] += 1
        def s(): a.I(f"s_add_u32 s{sg}, s{44 if rt == 0 else 46}, {t*2048}")
        def v(): a.vm(f"buffer_load_dwordx4 {vr(bf(t, rt))}, v{r.ST}, s[28:31], s{sg} offen", ("b", t))
        return s, v
    def group(t): return [dma_w(t, 0), load_b(t, 0), dma_w(t, 1), load_b(t, 1)]
    stamp(a, 0)
    INIT = OPT['k2_init']
    for t in range(INIT):
        for s, v in group(t): s(); v()
    a.I(f"v_bfe_u32 v{T+5}, v{L}, 2, 2")
    a.I(f"v_lshl_add_u32 v{T+1}, v{T+2}, 2, v{T+5}")
    a.I(f"v_and_b32 v{T}, 7, v{T+1}")
    a.I("s_lshl_b32 s60, s41, 2"); a.I(f"v_xor_b32 v{T}, s60, v{T}")
    a.I(f"v_and_b32 v{T+6}, 3, v{L}"); a.I(f"v_lshlrev_b32 v{T+6}, 3, v{T+6}")
    a.I(f"v_lshl_add_u32 v{T}, v{T}, 5, v{T+6}")
    a.I(f"v_lshl_add_u32 v{T}, v{T+1}, 8, v{T}")
    a.I("s_lshl_b32 s60, s41, 13"); a.I(f"v_add_u32 v{r.TB}, s60, v{T}")
    for t in range(1, 8): a.I(f"v_xor_b32 v{r.TB+t}, {t*32}, v{r.TB}")
    for t in range(8): a.I(f"v_add_u32 v{r.TB+8+t}, 0x10000, v{r.TB+t}")
    a.raw(f"""
s_cmp_lg_u32 s38, 2
s_cselect_b32 s47, 1, 0
s_cmp_eq_u32 s41, 0
s_cselect_b32 s47, s47, 0
s_lshl_b32 s60, s37, 2
s_add_u32 s60, s60, s39
s_lshl_b32 s70, s60, 4
s_add_u32 s70, s70, s38
s_lshl_b32 s70, s70, 13
s_add_u32 s70, s70, s45
s_add_u32 s70, s70, {PART}
s_lshl_b32 s71, s60, 2
s_add_u32 s71, s71, s38
s_lshl_b32 s71, s71, 15
s_add_u32 s71, s71, s45
s_add_u32 s71, s71, {PART}
s_lshl_b32 s68, s37, 7
s_lshl_b32 s61, s42, 5
s_add_u32 s68, s68, s61
s_and_b32 s61, s38, 1
s_lshl_b32 s61, s61, 4
s_add_u32 s68, s68, s61
s_lshl_b32 s69, s39, 7
s_lshl_b32 s61, s41, 6
s_add_u32 s69, s69, s61
s_lshr_b32 s61, s38, 1
s_lshl_b32 s61, s61, 5
s_add_u32 s69, s69, s61
s_lshl_b32 s69, s69, 1
s_lshl_b32 s68, s68, 10
s_add_u32 s68, s68, s69
""")
    srd(a, 8, 56, 2048*1024); srd(a, 16, 64, 1024); srd(a, 20, 66, 2048*1024)
    a.I(f"v_lshlrev_b32 v{T}, 4, v{T+2}"); a.I(f"v_lshl_add_u32 v{r.XO}, v{T+4}, 10, v{T}")
    a.I(f"v_lshlrev_b32 v{T+7}, 3, v{T+2}")
    NP = 8
    def read1(n, rd):
        t, T_ = divmod(n, 8)
        b = r.POOL + (n % NP)*4; sl = t % NSLOT2
        def f():
            sy.read(("w", t), ("f", n, rd))
            a.lds(f"ds_read_b64_tr_b16 v[{b+2*rd}:{b+2*rd+1}], v{r.TB + 8*(sl//4) + T_} offset:{(sl%4)*16384 + rd*4096}", ("f", n, rd))
        return f
    for t in range(NI): sy.expect(("w", t), 16)
    a.wait(vm=[("w", x) for x in range(OPT["k2_bar"])]); sy.barrier()
    stamp(a, 1)
    for n in range(lead):
        for rd in range(2): read1(n, rd)()
    DEP = OPT["k2_dep"]
    nxt = INIT
    def mk(t0, t1):
        nonlocal nxt
        st = Stream(a); st.start()
        for t in range(t0, t1):
            base = len(st.m)
            for T_ in range(8):
                n = t*8 + T_; b = r.POOL + (n % NP)*4
                for rt in range(2):
                    d = r.ACC + (T_*2 + rt)*4
                    i = st.mfma(f"{MF} {vr(d)}, {vr(b)}, {vr(bf(t, rt))}, {'0' if t == 0 else vr(d)}",
                                lg=("f", n, 1) if rt == 0 else None, vm=("b", t) if (rt == 0 and T_ == 0) else None)
                    if n + lead < NI*8: st.put(i, read1(n + lead, rt), "ds")
            bpos = base + 2*(8 - lead)
            if t + 1 < NI and ((t + 1) % OPT["k2_bar"] == 0):
                upto = min(NI - 1, t + OPT["k2_bar"])
                def fb(upto=upto, t=t):
                    a.wait(vm=[("w", x) for x in range(t + 1, upto + 1)]); sy.barrier()
                st.put(bpos, fb, "bar")
            pcs = []
            while nxt < NI and nxt <= t + DEP and len(pcs) < 8 and (nxt - NSLOT2) <= t - 2*OPT["k2_bar"] + 0:
                pcs += group(nxt); nxt += 1
            step = 16 // max(1, len(pcs)) if pcs else 0
            for k, (s, v) in enumerate(pcs):
                g = base + min(15, 1 + k*step)
                st.put(g - 1, s, "salu"); st.put(g, v, "vm")
            if t == OPT['xb_at']:
                st.put(base + 3, lambda: a.vm(f"buffer_load_dwordx4 {vr(r.XB)}, v{r.XO}, s[8:11], s68 offen", "xb"), "vm")
                st.put(base + 7, lambda: a.vm(f"buffer_load_dwordx2 v[{r.XB+4}:{r.XB+5}], v{T+7}, s[16:19], s69 offen", "xb"), "vm")
                st.put(base + 11, lambda: a.vm(f"buffer_load_dwordx2 v[{r.XB+6}:{r.XB+7}], v{T+7}, s[16:19], s69 offen offset:32", "xb"), "vm")
        st.emit()
    for t0 in range(0, 20, 5):
        mk(t0, t0 + 5); stamp(a, 2 + t0//5)
    mk(20, 21)
    a.wait(vm=("b", NI-1)); a.wait_all(vm=False)
    a.I("s_cmp_eq_u32 s47, 0"); a.I("s_cbranch_scc1 L2_skip")
    mk(21, 22)
    a.raw("L2_skip:")
    a.wait_all()
    a.I("s_barrier")
    stamp(a, 6)
    a.I("s_lshl_b32 s60, s36, 13"); a.I(f"v_add_u32 v{T}, s60, v{r.ST}")
    a.I("s_xor_b32 s60, s60, 0x8000"); a.I(f"v_add_u32 v{T+1}, s60, v{r.ST}")
    for k in range(8):
        a.lds(f"ds_write_b128 v{T}, {vr(r.ACC + 32 + k*4)} offset:{k*1024}", "pw")
    a.wait(lg="pw"); a.I("s_barrier")
    order = [0, 2, 1, 3, 4, 6, 5, 7]
    for k in order:
        a.lds(f"ds_read_b128 {vr(r.POOL + k*4)}, v{T+1} offset:{k*1024}", ("pr", k))
    a.I("s_mov_b32 s60, 0xfffffffe")
    for jj in range(4):
        a.I(f"s_add_u32 s{74+jj}, s70, {jj*4*8192}"); a.I(f"s_add_u32 s{78+jj}, s71, {jj*8192}")
        a.I(f"s_cmp_eq_u32 s38, {jj}"); a.I(f"s_cselect_b32 s{74+jj}, 0x40000000, s{74+jj}"); a.I(f"s_cselect_b32 s{78+jj}, 0x40000000, s{78+jj}")
    for jj in range(4):
        o = r.BF + jj*4
        for hh in range(2):
            k = (2*(jj//2) + hh)*2 + jj % 2
            d = r.ACC + k*4
            a.wait(lg=("pr", k))
            for i in range(4): a.I(f"v_add_f32 v{d+i}, v{d+i}, v{r.POOL+k*4+i}")
            a.I(f"v_cvt_pk_bf16_f32 v{o+2*hh}, v{d}, v{d+1}"); a.I(f"v_cvt_pk_bf16_f32 v{o+2*hh+1}, v{d+2}, v{d+3}")
        for i in range(4): a.I(f"v_min_u32 v{o+i}, s60, v{o+i}")
        a.vm(f"buffer_store_dwordx4 {vr(o)}, v{r.ST}, s[28:31], s{74+jj} offen sc1")
    stamp(a, 7)
    X, B = r.XB, r.XB + 4
    for i in range(2): a.I(f"v_permlane16_swap_b32 v{X+i}, v{X+2+i}")
    for i in range(2): a.I(f"v_permlane32_swap_b32 v{X+i}, v{X+2+i}")
    PB = r.POOL
    a.I("s_mov_b32 s72, 0")
    a.wait_all()
    a.raw("L2_poll:")
    for s in range(4):
        a.raw(f"buffer_load_dwordx4 {vr(PB+4*s)}, v{r.ST}, s[28:31], s{78+s} offen sc1")
    a.I("s_add_u32 s72, s72, 1")
    a.wait_all()
    a.I(f"v_max3_u32 v{T}, v{PB}, v{PB+1}, v{PB+2}")
    for i in range(3, 15, 2): a.I(f"v_max3_u32 v{T}, v{T}, v{PB+i}, v{PB+i+1}")
    a.I(f"v_max_u32 v{T}, v{T}, v{PB+15}")
    a.I(f"v_cmp_eq_u32 vcc, -1, v{T}")
    a.I("s_cmp_gt_u32 s72, 0x4000"); a.I("s_cbranch_scc1 L2_go")
    a.I("s_cbranch_vccz L2_go")
    if OPT["poll_sleep"]: a.I(f"s_sleep {OPT['poll_sleep']}")
    a.I("s_branch L2_poll")
    a.raw("L2_go:")
    for jj in range(4):
        a.I(f"s_cmp_lg_u32 s38, {jj}"); a.I(f"s_cbranch_scc1 L2_own{jj}")
        for i in range(4): a.C(f"v_mov_b32 v{PB+4*jj+i}, v{r.BF+4*jj+i}")
        a.raw(f"L2_own{jj}:")
    if OPT["stamp"]: a.I("v_writelane_b32 v255, s72, 15")
    stamp(a, 8)
    final_math(a, P=[PB, PB+4, PB+8], F=PB+12, X=X, B=B, T=r.ACC)
    a.vm(f"buffer_store_dwordx4 {vr(X)}, v{r.XO}, s[20:23], s68 offen")
    stamp(a, 9)
    if OPT["stamp"]: a.wait_all()
    stamp(a, 10); stamp_store(a, 2, 28)
    a.raw("L2_end:\ns_endpgm")
    return a.finalize(), a

def final_math(a, P, F, X, B, T):
    def unpack(d, s, hi): return f"v_and_b32 v{d}, 0xffff0000, v{s}" if hi else f"v_lshlrev_b32 v{d}, 16, v{s}"
    def rb(d): return [f"v_cvt_pk_bf16_f32 v{d}, v{d}, v{d}", f"v_lshlrev_b32 v{d}, 16, v{d}"]
    chains = []
    for e in range(8):
        i, hi = e // 2, e % 2
        s_, t1, g_, t2 = T + 4*e, T + 4*e + 1, T + 4*e + 2, T + 4*e + 3
        c = [unpack(g_, F+i, hi), unpack(t1, B+i, hi), f"v_add_f32 v{g_}, v{g_}, v{t1}"] + rb(g_)
        c += [f"v_mul_f32 v{t1}, {f32(-math.log2(math.e))}, v{g_}", f"v_exp_f32 v{t1}, v{t1}"]
        c += [unpack(s_, P[0]+i, hi), unpack(t2, P[1]+i, hi), f"v_add_f32 v{t1}, 1.0, v{t1}", f"v_rcp_f32 v{t1}, v{t1}",
              f"v_add_f32 v{s_}, v{s_}, v{t2}", unpack(t2, P[2]+i, hi), f"v_add_f32 v{s_}, v{s_}, v{t2}"] + rb(s_)
        c += [f"v_mul_f32 v{g_}, v{g_}, v{t1}"] + rb(g_)
        c += [f"v_mul_f32 v{s_}, v{s_}, v{g_}"] + rb(s_)
        c += [unpack(t2, X+i, hi), f"v_add_f32 v{s_}, v{s_}, v{t2}"]
        chains.append(c)
    for k in range(len(chains[0])):
        for c in chains: a.I(c[k])
    for i in range(4): a.I(f"v_cvt_pk_bf16_f32 v{X+i}, v{T+8*i}, v{T+8*i+4}")
    for i in range(2): a.I(f"v_permlane32_swap_b32 v{X+i}, v{X+2+i}")
    for i in range(2): a.I(f"v_permlane16_swap_b32 v{X+i}, v{X+2+i}")

KRING, VRING = 0, 65536
WQRING, NWQ = 24576, 5
W1RING, NW1 = 73728, 3
XRING = 98304
class R1:
    L = 1; X0 = 2; WQ = 6; W1 = 7; KD = 8; VD = 9; XR = 10; TB = 12; W1B = 20; KB = 23; ST = 27
    T = 28
    POOL = 36
    ACC = 68
    FACC = 132
    XF = 156
    B1 = 188
    QF = 196
    S = 132; P = 164; LACC = 180; ONE = 188
    PF = 252
    SENT = 228

def k1_setup(a, r):
    L, T = r.L, r.T
    a.raw("""
s_cmp_ge_u32 s2, 256
s_cbranch_scc1 L1_end
s_load_dwordx2 s[54:55], s[0:1], 96
s_load_dwordx2 s[52:53], s[0:1], 24
s_load_dwordx4 s[56:59], s[0:1], 48
s_load_dwordx4 s[48:51], s[0:1], 8
s_load_dwordx2 s[4:5], s[0:1], 32
s_load_dwordx2 s[6:7], s[0:1], 64
v_lshrrev_b32 v2, 6, v0
v_and_b32 v1, 63, v0
v_readfirstlane_b32 s36, v2
s_and_b32 s37, s2, 7
s_lshl_b32 s37, s37, 2
s_lshr_b32 s38, s2, 3
s_and_b32 s39, s38, 3
s_add_u32 s37, s37, s39
s_lshr_b32 s38, s38, 2
s_mul_i32 s39, s39, ROTMUL
s_add_u32 s39, s39, s38
s_and_b32 s39, s39, ROTMASK
s_mul_i32 s47, s37, 3
s_lshl_b32 s60, s37, 1
s_add_u32 s60, s60, 22
s_cmp_lt_u32 s37, 22
s_cselect_b32 s47, s47, s60
""".replace("ROTMASK", str(OPT["rot"])).replace("ROTMUL", str(OPT["rotm"])))
    a.I("s_lshl_b32 s60, s38, 8"); a.I("s_lshl_b32 s61, s36, 5"); a.I("s_add_u32 s60, s60, s61")
    a.I(f"v_lshrrev_b32 v{T}, 3, v{L}"); a.I(f"v_add_u32 v{T}, s60, v{T}")
    a.I(f"v_lshlrev_b32 v{T}, 10, v{T}")
    a.I(f"v_and_b32 v{T+1}, 7, v{L}"); a.I(f"v_lshrrev_b32 v{T+2}, 4, v{L}")
    a.I(f"v_xor_b32 v{T+1}, v{T+1}, v{T+2}")
    a.I(f"v_lshl_add_u32 v{r.X0}, v{T+1}, 4, v{T}")
    a.I(f"v_xor_b32 v{r.X0+1}, 64, v{r.X0}"); a.I(f"v_add_u32 v{r.X0+1}, 8192, v{r.X0+1}")
    a.I(f"v_add_u32 v{r.X0+2}, 16384, v{r.X0}"); a.I(f"v_add_u32 v{r.X0+3}, 16384, v{r.X0+1}")
    a.I("s_lshl_b32 s61, s36, 2")
    a.I(f"v_add_u32 v{T+3}, s61, v{T+2}")
    a.I(f"v_and_b32 v{T+4}, 15, v{L}")
    a.I(f"v_lshrrev_b32 v{T+5}, 1, v{T+3}"); a.I(f"v_and_b32 v{T+5}, 4, v{T+5}")
    a.I(f"v_or_b32 v{T+5}, v{T+5}, v{T+2}")
    a.I(f"v_lshlrev_b32 v{T+5}, 1, v{T+5}"); a.I(f"v_xor_b32 v{T+5}, v{T+5}, v{T+4}")
    a.I(f"v_lshlrev_b32 v{T+5}, 4, v{T+5}")
    a.I(f"v_lshl_add_u32 v{r.WQ}, v{T+3}, 13, v{T+5}")
    a.I("s_lshl_b32 s61, s37, 8"); a.I(f"v_add_u32 v{r.WQ}, s61, v{r.WQ}")
    a.I("s_lshl_b32 s61, s36, 3")
    a.I(f"v_lshrrev_b32 v{T+5}, 3, v{L}"); a.I(f"v_add_u32 v{T+5}, s61, v{T+5}")
    a.I(f"v_and_b32 v{T+6}, 2, v{T+5}")
    a.I(f"v_lshrrev_b32 v{T+7}, 1, v{T+5}"); a.I(f"v_and_b32 v{T+7}, 4, v{T+7}")
    a.I(f"v_or_b32 v{T+6}, v{T+6}, v{T+7}")
    a.I(f"v_and_b32 v{T+7}, 7, v{L}"); a.I(f"v_xor_b32 v{T+6}, v{T+6}, v{T+7}")
    a.I(f"v_lshlrev_b32 v{T+6}, 4, v{T+6}")
    a.I(f"v_mul_u32_u24 v{T+5}, 2752, v{T+5}"); a.I(f"v_add_u32 v{r.W1}, v{T+5}, v{T+6}")
    a.I("s_lshl_b32 s61, s47, 5"); a.I(f"v_add_u32 v{r.W1}, s61, v{r.W1}")
    a.I("s_lshl_b32 s45, s36, 10")
    a.I("s_lshl_b32 s44, s36, 13"); a.I(f"s_add_u32 s44, s44, {XRING}")
    a.I("s_lshl_b32 s46, s37, 19"); a.I(f"s_add_u32 s46, s46, {1536*256}")

def k1_setup2(a, r):
    L, T = r.L, r.T
    a.I(f"v_and_b32 v{T+5}, 15, v{T+3}"); a.I(f"v_xor_b32 v{T+5}, v{T+5}, v{T+4}")
    a.I(f"v_lshlrev_b32 v{T+5}, 4, v{T+5}"); a.I(f"v_lshl_add_u32 v{r.KD}, v{T+3}, 8, v{T+5}")
    a.I(f"v_and_b32 v{T+5}, 7, v{T+3}"); a.I(f"v_lshlrev_b32 v{T+5}, 1, v{T+5}"); a.I(f"v_xor_b32 v{T+5}, v{T+5}, v{T+4}")
    a.I(f"v_lshlrev_b32 v{T+5}, 4, v{T+5}"); a.I(f"v_lshl_add_u32 v{r.VD}, v{T+3}, 8, v{T+5}")
    a.I(f"v_lshrrev_b32 v{T+5}, 1, v{T+4}"); a.I(f"v_xor_b32 v{T+5}, v{T+5}, v{T+2}")
    a.I(f"v_lshlrev_b32 v{T+5}, 4, v{T+5}"); a.I(f"v_lshl_add_u32 v{T+5}, v{T+4}, 7, v{T+5}")
    a.I(f"v_add_u32 v{r.XR}, s44, v{T+5}"); a.I(f"v_xor_b32 v{r.XR+1}, 64, v{r.XR}")
    a.I(f"v_bfe_u32 v{T+5}, v{L}, 2, 2")
    a.I(f"v_and_b32 v{T+6}, 3, v{L}"); a.I(f"v_lshlrev_b32 v{T+6}, 3, v{T+6}")
    a.I(f"v_and_b32 v{T+7}, 1, v{T+2}")
    a.I(f"v_lshl_add_u32 v{T}, v{T+7}, 2, v{T+5}")
    a.I(f"v_lshl_add_u32 v{T}, v{T}, 5, v{T+6}")
    a.I(f"v_lshl_add_u32 v{T+1}, v{T+2}, 3, v{T+5}")
    a.I(f"v_lshl_add_u32 v{r.TB}, v{T+1}, 8, v{T}")
    for t in range(1, 8): a.I(f"v_xor_b32 v{r.TB+t}, {t*32}, v{r.TB}")
    a.I(f"v_lshrrev_b32 v{T}, 1, v{T+5}"); a.I(f"v_lshl_add_u32 v{T}, v{T+7}, 1, v{T}")
    a.I(f"v_lshl_add_u32 v{T}, v{T}, 5, v{T+6}")
    a.I(f"v_lshl_add_u32 v{T}, v{T+1}, 7, v{T}")
    a.I(f"v_add_u32 v{r.W1B}, {W1RING}, v{T}")
    for t in range(1, 3): a.I(f"v_xor_b32 v{r.W1B+t}, {t*32}, v{r.W1B}")
    a.I(f"v_xor_b32 v{T}, v{T+4}, v{T+2}"); a.I(f"v_lshlrev_b32 v{T}, 4, v{T}")
    a.I(f"v_lshl_add_u32 v{r.KB}, v{T+4}, 8, v{T}")
    for ks in range(1, 4): a.I(f"v_xor_b32 v{r.KB+ks}, {ks*64}, v{r.KB}")
    a.I(f"v_lshlrev_b32 v{r.ST}, 4, v{L}")
    a.I(f"v_lshlrev_b32 v{T+3}, 10, v{T+2}"); a.I(f"v_sub_u32 v{T+3}, {VRING}, v{T+3}")

def k1(lead=5, leadb=6):
    a = Asm(); r = R1; L, T = r.L, r.T; sy = Sync(a)
    k1_setup(a, r)
    PS = 64
    def piece_sgprs(p):
        dst = PS + 4*p
        a.I(f"s_add_u32 s{dst}, s39, {p}"); a.I(f"s_and_b32 s{dst}, s{dst}, 7")
        a.I(f"s_mul_i32 s{dst+3}, s{dst}, {64*2752}")
        a.I(f"s_lshl_b32 s{dst+1}, s{dst}, 19"); a.I(f"s_add_u32 s{dst+2}, s{dst+1}, {32*8192}")
        a.I(f"s_lshl_b32 s{dst}, s{dst}, 7")
    piece_sgprs(0); piece_sgprs(1)
    a.I("s_waitcnt lgkmcnt(0)")
    srd(a, 8, 54, 2048*1024); srd(a, 12, 52, 512*8192); srd(a, 16, 56, 512*2752)
    ntw = "nt " if OPT["nt_w"] else ""; ntk = "nt " if OPT["nt_kv"] else ""
    def slots(base, n): return [("u", base//8192 + k) for k in range(n//8192)] if n >= 8192 else [("h", base//4096)]
    def dma_x(p, j):
        def s(): a.I(f"s_add_u32 m0, s44, {(p%2)*4096 + j*1024}")
        def v():
            sy.dma(("x", p), [("xs", p % 2)])
            a.vm(f"buffer_load_dwordx4 v{r.X0+j}, s[8:11], s{PS+4*p} offen lds", ("x", p))
        return s, v
    def dma_wq(s_):
        def s(): a.I(f"s_add_u32 m0, s45, {WQRING + (s_%NWQ)*8192}")
        def v():
            sy.dma(("wq", s_), [(WQRING + (s_%NWQ)*8192)//8192])
            a.vm(f"buffer_load_dwordx4 v{r.WQ}, s[12:15], s{PS+4*(s_//2)+1+(s_%2)} offen {ntw}lds", ("wq", s_))
        return s, v
    def dma_w1(p):
        def s(): a.I(f"s_add_u32 m0, s45, {W1RING + (p%NW1)*8192}")
        def v():
            sy.dma(("w1", p), [(W1RING + (p%NW1)*8192)//8192])
            a.vm(f"buffer_load_dwordx4 v{r.W1}, s[16:19], s{PS+4*p+3} offen {ntw}lds", ("w1", p))
        return s, v
    def dma_kv(which, i):
        base = (KRING if which == "k" else VRING) + (i % 8)*8192
        def s():
            a.I(f"s_add_u32 s62, s46, {i*8192}"); a.I(f"s_add_u32 m0, s45, {base}")
        def v():
            if base >= XRING: assert ("x", 6) in sy.free and ("x", 7) in sy.free and "pa_done" in sy.free
            sy.dma((which, i), [base//8192])
            a.vm(f"buffer_load_dwordx4 v{r.KD if which=='k' else r.VD}, {'s[20:23]' if which=='k' else 's[24:27]'}, s62 offen {ntk}lds", (which, i))
        return s, v
    def now(p): p[0](); p[1]()
    stamp(a, 0)
    for j in range(4): now(dma_x(0, j))
    now(dma_wq(0)); now(dma_w1(0)); now(dma_wq(1))
    for p in range(2, 8): piece_sgprs(p)
    srd(a, 20, 48, 32*2048*256); srd(a, 24, 50, 32*2048*256); srd(a, 32, 58, 2752); srd(a, 28, 54, WS_BYTES)
    if OPT["pf_code"]:
        a.I("s_getpc_b64 s[40:41]"); a.raw("L1_pc:")
        a.I(f"v_lshlrev_b32 v{r.PF+1}, 7, v0")
        a.I(f"v_min_u32 v{r.PF+1}, L_code_end-L1_pc-4, v{r.PF+1}")
        a.vm(f"global_load_dword v{r.PF}, v{r.PF+1}, s[40:41]", "pf")
    a.I(f"v_lshlrev_b32 v{T}, 3, v{T+2}"); a.I("s_lshl_b32 s61, s47, 5")
    for t in range(3):
        a.vm(f"buffer_load_dwordx2 v[{r.B1+2*t}:{r.B1+2*t+1}], v{T}, s[32:35], s61 offen offset:{32*t}", "b1")
    k1_setup2(a, r)
    for i in range(4): a.I(f"v_mov_b32 v{r.SENT+i}, -1")
    a.I("s_lshl_b32 s42, s2, 15"); a.I("s_lshl_b32 s43, s36, 12"); a.I("s_add_u32 s42, s42, s43"); a.I(f"s_add_u32 s42, s42, {PART}")

    NP, NF = 8, 11
    for s_ in range(16): sy.expect(("wq", s_), 16)
    for p in range(8): sy.expect(("w1", p), 12); sy.expect(("x", p), 4)
    def pa_read(n, rd):
        s_, t = divmod(n, NF)
        b = r.POOL + (n % NP)*4
        def f():
            if t < 8:
                sy.read(("wq", s_), ("f", n, rd))
                a.lds(f"ds_read_b64_tr_b16 v[{b+2*rd}:{b+2*rd+1}], v{r.TB+t} offset:{WQRING + (s_%NWQ)*8192 + rd*1024}", ("f", n, rd))
            else:
                sy.read(("w1", s_//2), ("f", n, rd))
                a.lds(f"ds_read_b64_tr_b16 v[{b+2*rd}:{b+2*rd+1}], v{r.W1B+t-8} offset:{((s_//2)%NW1)*8192 + (s_%2)*4096 + rd*512}", ("f", n, rd))
        return f
    def xf(s_, rt): return r.XF + ((s_ % 4)*2 + rt)*4
    def x_read(p, e, rt):
        def f():
            a.wait(vm=("x", p))
            sy.read(("x", p), ("xf", 2*p+e, rt), private=True)
            b = xf(2*p+e, rt)
            a.lds(f"ds_read_b128 v[{b}:{b+3}], v{r.XR+e} offset:{(p%2)*4096 + rt*2048}", ("xf", 2*p+e, rt))
        return f
    for e in range(2):
        for rt in range(2): x_read(0, e, rt)()
    a.wait(vm=[("wq", 0), ("w1", 0)]); sy.barrier()
    stamp(a, 1)
    for n in range(lead):
        for rd in range(2): pa_read(n, rd)()
    def pf_kv():
        a.I(f"v_and_b32 v{r.PF+1}, 127, v0"); a.I(f"v_lshlrev_b32 v{r.PF+1}, 7, v{r.PF+1}")
        a.I("s_lshl_b32 s60, s38, 14"); a.I("s_add_u32 s60, s60, s46")
        a.I("s_cmp_lt_u32 s36, 2"); a.I("s_cselect_b32 s96, s20, s24"); a.I("s_cselect_b32 s97, s21, s25")
        a.I("s_cmp_lt_u32 s36, 4"); a.I("s_cselect_b32 s98, s22, 0"); a.I("s_mov_b32 s99, 0x20000")
        a.vm(f"buffer_load_dword v{r.PF}, v{r.PF+1}, s[96:99], s60 offen {'nt' if OPT['pf_kv_nt'] else ''}", "pf")
    plan = {s_: [] for s_ in range(16)}
    plan[0] += [dma_x(1, j) for j in range(4)] + [dma_wq(2), dma_w1(1), dma_wq(3)]
    plan[1] += [dma_wq(4), dma_w1(2)]
    late = {s_: [] for s_ in range(16)}
    for s_ in range(16):
        p = s_ // 2
        if s_ % 2 == 0 and p + 2 < 8:
            tgt = s_ if s_ > 0 else 1
            plan[tgt] += [("xfree", p)] + [dma_x(p+2, j) for j in range(4)]
        if s_ >= 1 and s_ + 4 < 16: late[s_].append(dma_wq(s_+4))
        if s_ % 2 == 0 and p >= 1 and p + 2 < 8: late[s_].append(dma_w1(p+2))
    plan[11] += [dma_kv("k", 0)]; plan[13] += [dma_kv("k", 1), dma_kv("v", 0)]; plan[15] += [dma_kv("k", 2)]
    st = Stream(a); st.start()
    for s_ in range(16):
        p = s_ // 2
        base = len(st.m)
        for t in range(NF):
            n = s_*NF + t; b = r.POOL + (n % NP)*4
            for rt in range(2):
                d = (r.ACC + (t*2 + rt)*4) if t < 8 else (r.FACC + ((t-8)*2 + rt)*4)
                lg = [("f", n, 1)] + ([("xf", s_, 0), ("xf", s_, 1)] if t == 0 else []) if rt == 0 else None
                i = st.mfma(f"{MF} {vr(d)}, {vr(b)}, {vr(xf(s_, rt))}, {'0' if s_ == 0 else vr(d)}", lg=lg)
                if n + lead < 16*NF: st.put(i, pa_read(n + lead, rt), "ds")
        bpos = base + 2*(NF - lead)
        if s_ < 15:
            def fb(s_=s_):
                a.wait(vm=[("wq", s_+1), ("w1", (s_+1)//2)]); sy.barrier()
            st.put(bpos, fb, "bar")
        g = base + 1
        for pc in plan[s_]:
            if pc[0] == "xfree":
                st.put(g - 1, (lambda p=pc[1]: sy.private_free(("x", p))), "salu"); continue
            st.put(g - 1, pc[0], "salu"); st.put(g, pc[1], "vm"); g += 2 if len(plan[s_]) > 5 else 3
        g = max(g, bpos + 2)
        for pc in late[s_]:
            st.put(g - 1, pc[0], "salu"); st.put(g, pc[1], "vm"); g += 3
        assert g <= base + 24, (s_, g - base)
        if s_ % 2 == 1 and p + 1 < 8:
            for k, (e, rt) in enumerate([(0, 0), (0, 1), (1, 0), (1, 1)]):
                st.put(base + 2 + 3*k, x_read(p+1, e, rt), "x")
        if s_ == OPT["pf_kv"]: st.put(base + 20, pf_kv, "x")
        if s_ in (4, 8, 12) and OPT["stamp"]: st.put(base, (lambda s_=s_: stamp(a, 1 + s_//4)), "x")
    st.emit()
    stamp(a, 5)
    a.I(f"s_mov_b32 s60, {f32(CSCALE)}")
    for rt in range(2):
        for ks in range(4):
            q = r.QF + (rt*4 + ks)*4
            for hh in range(2):
                d = r.ACC + ((2*ks+hh)*2 + rt)*4
                for i in range(4): a.I(f"v_mul_f32 v{d+i}, s60, v{d+i}")
                a.I(f"v_cvt_pk_bf16_f32 v{q+2*hh}, v{d}, v{d+1}")
                a.I(f"v_cvt_pk_bf16_f32 v{q+2*hh+1}, v{d+2}, v{d+3}")
    for sw in ("v_permlane32_swap_b32", "v_permlane16_swap_b32"):
        for rt in range(2):
            for ks in range(4):
                q = r.QF + (rt*4 + ks)*4
                for i in range(2): a.I(f"{sw} v{q+i}, v{q+2+i}")
    a.wait(vm=[("k", 0), ("k", 1), "b1"])
    sy.private_free(("x", 6)); sy.private_free(("x", 7))
    sy.barrier(); sy.free.add("pa_done")
    for x in [("k", 3), ("v", 1), ("k", 4), ("v", 2)]: now(dma_kv(*x))
    for t in range(8): a.I(f"v_add_u32 v{r.TB+t}, v{T+3}, v{r.TB+t}")
    a.I("s_lshl_b32 s60, s38, 4"); a.I("s_lshl_b32 s61, s36, 1"); a.I("s_add_u32 s60, s60, s61")
    a.I(f"s_mul_i32 s61, s60, {43*1024}"); a.I(f"s_add_u32 s61, s61, {HFR}")
    a.I(f"s_lshl_b32 s63, s60, 17"); a.I("s_lshl_b32 s96, s37, 12"); a.I("s_add_u32 s63, s63, s96"); a.I(f"s_add_u32 s63, s63, {OFR}")
    for t in range(3):
        a.I(f"s_add_u32 s96, s47, {t}"); a.I("s_lshr_b32 s97, s96, 1"); a.I("s_lshl_b32 s97, s97, 10")
        a.I("s_and_b32 s96, s96, 1"); a.I("s_lshl_b32 s96, s96, 3"); a.I("s_add_u32 s96, s96, s97"); a.I("s_add_u32 s96, s96, s61")
        a.I(f"s_add_u32 s97, s96, {43*1024}")
        if t == 2:
            a.I("s_cmp_ge_u32 s37, 22"); a.I("s_cselect_b32 s96, 0x40000000, s96"); a.I("s_cselect_b32 s97, 0x40000000, s97")
        bb = r.B1 + 2*t
        a.I(f"v_lshlrev_b32 v{T}, 16, v{bb}"); a.I(f"v_and_b32 v{T+1}, 0xffff0000, v{bb}")
        a.I(f"v_lshlrev_b32 v{T+4}, 16, v{bb+1}"); a.I(f"v_and_b32 v{T+5}, 0xffff0000, v{bb+1}")
        bias = [T, T+1, T+4, T+5]
        for rt in range(2):
            d = r.FACC + (t*2 + rt)*4
            for i in range(4): a.I(f"v_add_f32 v{d+i}, v{d+i}, v{bias[i]}")
            for i in range(4): a.I(f"v_max_f32 v{d+i}, 0, v{d+i}")
            for i in range(4): a.I(f"v_mul_f32 v{d+i}, v{d+i}, v{d+i}")
            a.I(f"v_cvt_pk_bf16_f32 v{d}, v{d}, v{d+1}"); a.I(f"v_cvt_pk_bf16_f32 v{d+1}, v{d+2}, v{d+3}")
            a.vm(f"buffer_store_dwordx2 v[{d}:{d+1}], v{r.ST}, s[28:31], s{96+rt} offen", "hst")
    for i in range(4): a.I(f"v_mov_b32 v{r.ONE+i}, 0x3f803f80")
    stamp(a, 6)
    phase_b(a, r, sy, dma_kv, leadb)
    a.raw("L1_end:\ns_endpgm")
    return a.finalize(), a

def phase_b(a, r, sy, dma_kv, leadb):
    T = r.T; NP = 8
    seq = [("k", 0, j) for j in range(8)]
    for i in range(17):
        if i + 1 < 16: seq += [("k", i+1, j) for j in range(8)]
        if i >= 1: seq += [("v", i-1, j) for j in range(8)]
    for i in range(16): sy.expect(("k", i), 8); sy.expect(("v", i), 16)
    def reads(n):
        kind, i, j = seq[n]; b = r.POOL + (n % NP)*4
        if kind == "k":
            def f():
                sy.read(("k", i), ("g", n, 1))
                a.lds(f"ds_read_b128 {vr(b)}, v{r.KB + j%4} offset:{KRING + (i%8)*8192 + (j//4)*4096}", ("g", n, 1))
            return [f]
        def g(rd):
            def f():
                sy.read(("v", i), ("g", n, rd))
                a.lds(f"ds_read_b64_tr_b16 v[{b+2*rd}:{b+2*rd+1}], v{r.TB+j} offset:{(i%8)*8192 + rd*4096}", ("g", n, rd))
            return f
        return [g(0), g(1)]
    def Sreg(i, rt, kt): return r.S + (i % 2)*16 + (rt*2 + kt)*4
    def Preg(i, rt): return r.P + (i % 2)*8 + rt*4
    def softmax_ops(i):
        ops = []; sb = r.S + (i % 2)*16; pb = r.P + (i % 2)*8
        for k in range(16):
            ops.append(f"v_exp_f32 v{sb+k}, v{sb+k}")
            if k >= 2 and k % 2 == 0: ops.append(f"v_cvt_pk_bf16_f32 v{pb+(k-2)//2}, v{sb+k-2}, v{sb+k-1}")
        ops.append(f"v_cvt_pk_bf16_f32 v{pb+7}, v{sb+14}, v{sb+15}")
        return ops
    for n in range(leadb):
        for f in reads(n): f()
    steps = [(-1, 8)]
    for i in range(17): steps.append((i, (8 if i + 1 < 16 else 0) + (8 if i >= 1 else 0)))
    st = Stream(a); st.start()
    guarded = {("k", 0), ("k", 1)}
    PBAR = OPT["pb_bar"]
    n = 0
    def pf_w_setup():
        a.I("s_and_b32 s60, s2, 7"); a.I("s_lshr_b32 s60, s60, 1"); a.I("s_cmp_eq_u32 s60, 3")
        a.I("s_cselect_b32 s8, s6, s4"); a.I("s_cselect_b32 s9, s7, s5")
        a.I(f"s_mov_b32 s10, {4096*1024}"); a.I(f"s_cselect_b32 s10, {1376*1024}, s10"); a.I("s_mov_b32 s11, 0x20000")
        a.I(f"s_mul_i32 s60, s60, {43*32768}"); a.I("s_cselect_b32 s60, 0, s60")
        a.I("s_lshr_b32 s61, s2, 3"); a.I(f"s_mul_i32 s61, s61, {43*1024}"); a.I("s_add_u32 s43, s60, s61")
        a.I(f"v_lshlrev_b32 v{r.PF+1}, 7, v{r.L}"); a.I(f"v_add_u32 v{r.PF+1}, s45, v{r.PF+1}")
        a.I(f"v_cmp_gt_u32 vcc, 8, v{r.L}"); a.I(f"v_cndmask_b32 v{r.PF+1}, -1, v{r.PF+1}, vcc")
    def pf_w():
        a.vm(f"buffer_load_dword v{r.PF}, v{r.PF+1}, s[8:11], s43 offen", "pf")
        a.I("s_add_u32 s43, s43, 8192")
    pf_w_setup()
    for (i, cnt) in steps:
        base = len(st.m)
        for fi in range(cnt):
            kind, ii, j = seq[n]; b = r.POOL + (n % NP)*4
            nn = n + leadb
            rds = reads(nn) if nn < len(seq) else []
            for rt in range(2):
                if kind == "k":
                    kt, ks = j // 4, j % 4; d = Sreg(ii, rt, kt)
                    m = st.mfma(f"{MF} {vr(d)}, {vr(b)}, {vr(r.QF + (rt*4+ks)*4)}, {'0' if ks == 0 else vr(d)}", lg=("g", n, 1) if rt == 0 else None)
                else:
                    d = r.ACC + (j*2 + rt)*4
                    m = st.mfma(f"{MF} {vr(d)}, {vr(b)}, {vr(Preg(ii, rt))}, {'0' if ii == 0 else vr(d)}", lg=("g", n, 1) if rt == 0 else None)
                k0 = 2 - len(rds)
                if rt >= k0:
                    if rt == k0 and seq[nn][:2] not in guarded:
                        k2_, i2, _ = seq[nn]
                        tags = []
                        if k2_ == "k":
                            for u in range(PBAR):
                                if i2 + u < 16: tags.append(("k", i2 + u))
                                if 0 <= i2 + u - 2 < 16: tags.append(("v", i2 + u - 2))
                        else:
                            tags = [("v", x) for x in range(i2, 16)]
                        def fb(tags=tags):
                            a.wait(vm=tags); sy.barrier()
                        st.put(m, fb, "bar")
                        guarded |= set(tags)
                    st.put(m, rds[rt - k0], "ds")
            if kind == "v" and j == 3:
                for rt in range(2):
                    l = r.LACC + rt*4
                    st.mfma(f"{MF} {vr(l)}, {vr(r.ONE)}, {vr(Preg(ii, rt))}, {'0' if ii == 0 else vr(l)}")
            n += 1
        end = len(st.m)
        if 0 <= i < 16: st.spread_valu(softmax_ops(i), base, end)
        dm = []
        if 0 <= i:
            if i + 5 < 16: dm.append(dma_kv("k", i+5))
            if i + 3 < 16: dm.append(dma_kv("v", i+3))
        free = [g for g in range(base + 1, end) if not st.has(g, "ds") and not st.has(g, "bar")]
        for k, pc in enumerate(dm):
            g = free[min(len(free) - 1, 1 + 2*k)] if len(free) > 2 else base + 3 + 4*k
            st.put(g - 1, pc[0], "salu"); st.put(g, pc[1], "vm")
        if OPT["pf_w"] >= 0 and i >= OPT["pf_w"] and (i - OPT["pf_w"]) % OPT["pf_ws"] == 0 and (i - OPT["pf_w"]) // OPT["pf_ws"] < 6: st.put(base + 9, pf_w, "x")
        if i == OPT["fill_at"]:
            for k in range(4):
                st.put(base + 2 + 3*k, (lambda k=k: a.vm(f"buffer_store_dwordx4 {vr(r.SENT)}, v{r.ST}, s[28:31], s42 offen offset:{k*1024}", "fill")), "x")
        if i in (4, 8, 12) and OPT["stamp"]: st.put(base, (lambda i=i: stamp(a, 6 + i//4)), "x")
    st.emit()
    stamp(a, 10)
    for rt in range(2): a.I(f"v_rcp_f32 v{T+rt}, v{r.LACC+rt*4}")
    for rt in range(2):
        for ks in range(4):
            o = r.QF + (rt*4 + ks)*4
            for hh in range(2):
                d = r.ACC + ((2*ks+hh)*2 + rt)*4
                for i in range(4): a.I(f"v_mul_f32 v{d+i}, v{T+rt}, v{d+i}")
                a.I(f"v_cvt_pk_bf16_f32 v{o+2*hh}, v{d}, v{d+1}")
                a.I(f"v_cvt_pk_bf16_f32 v{o+2*hh+1}, v{d+2}, v{d+3}")
            if ks == 0 and rt == 1: a.I(f"s_add_u32 s63, s63, {128*1024}")
            a.vm(f"buffer_store_dwordx4 {vr(o)}, v{r.ST}, s[28:31], s63 offen offset:{ks*1024}")
    stamp(a, 11)
    if OPT["stamp"]: a.wait_all()
    stamp(a, 12); stamp_store(a, 1, 28)

def build():
    kern.STAMP = bool(OPT["stamp"])
    o = """; generated by gen/kern2.py
; @launch kernel=ln_kernel grid=(256,1,1) block=(512,1,1) lds=0
; @launch kernel=attn_kernel grid=(256,1,1) block=(512,1,1) lds=163840
; @launch kernel=gemm_kernel grid=(256,1,1) block=(512,1,1) lds=131072
.amdgcn_target "amdgcn-amd-amdhsa--gfx950"
.text
"""
    o += khead("ln_kernel") + kern.k0()
    t, a1 = k1(); o += khead("attn_kernel") + t
    t, a2 = k2(); o += khead("gemm_kernel") + t + "L_code_end:\n"
    o += '.section .rodata,"a"\n' + kd("ln_kernel", 32) + kd("attn_kernel") + kd("gemm_kernel")
    print("nops added:", a1.nops_added, a2.nops_added, file=sys.stderr)
    return o
if __name__ == "__main__":
    for x in sys.argv[2:]:
        k, v = x.split("="); assert k in OPT, k; OPT[k] = int(v)
    open(sys.argv[1], "w").write(build())
```

```python
import sys, math, struct
from asmlib import *
import kern, kern2
from kern import f32, srd, MF, CSCALE, OFR, HFR, PART, WS_BYTES
from kern2 import OPT, stamp, stamp_store, Sync, Stream, k2, k1_setup, k1_setup2, KRING, VRING, WQRING, NWQ, W1RING, NW1, XRING

OPT.update(dict(nt_kv=1, rot=7, pf_kv=4, cons_at=7, chk_at=9, slow=1, d_noat=0, d_nosrow=0, d_pre=0, rotm=0))
STATS = 44 << 20
CSW = 45 << 20
MF16 = "v_mfma_f32_16x16x16_bf16"
NONCE_LDS = 16384
TABLE = XRING + 7*8192

class R1:
    L = 1; X0 = 2; WQ = 6; W1 = 7; KD = 8; VD = 9; XR = 10; TB = 12; W1B = 20; KB = 23; ST = 27
    T = 28
    POOL = 36
    ACC = 68
    FACC = 132
    XF = 156
    ONE = 220
    CSQ = 224; CSF = 228
    BA = 232
    U = 236
    PF = 252
    QF = 156; S = 188; P = 132; LACC = 148
    SENT = 224
    SC = 228

def dpp(v, m): return f"v_add_f32_dpp v{v}, v{v}, v{v} {m} row_mask:0xf bank_mask:0xf"
def xsum(v, t, sws):
    o = []
    for sw in sws: o += [f"v_mov_b32 v{t}, v{v}", f"{sw} v{v}, v{t}", f"v_add_f32 v{v}, v{v}, v{t}"]
    return o
def allsum(v, t):
    return [dpp(v, m) for m in ("quad_perm:[1,0,3,2]", "quad_perm:[2,3,0,1]", "row_half_mirror", "row_mirror")] + \
           xsum(v, t, ("v_permlane16_swap_b32", "v_permlane32_swap_b32"))
def rb(d, s): return [f"v_cvt_pk_bf16_f32 v{d}, v{s}, v{s}", f"v_lshlrev_b32 v{d}, 16, v{d}"]

def stats_ops(U):
    X, E, SM, TM, VR = U, U+4, U+12, U+13, U+14
    o = []
    for i in range(4): o += [f"v_lshlrev_b32 v{E+2*i}, 16, v{X+i}", f"v_and_b32 v{E+2*i+1}, 0xffff0000, v{X+i}"]
    o += [f"v_add_f32 v{SM}, v{E}, v{E+1}", f"v_add_f32 v{TM}, v{E+2}, v{E+3}", f"v_add_f32 v{X}, v{E+4}, v{E+5}", f"v_add_f32 v{X+1}, v{E+6}, v{E+7}",
          f"v_add_f32 v{SM}, v{SM}, v{TM}", f"v_add_f32 v{X}, v{X}, v{X+1}", f"v_add_f32 v{SM}, v{SM}, v{X}"]
    o += allsum(SM, TM)
    o += [f"v_mul_f32 v{SM}, {f32(1/512)}, v{SM}"]
    for i in range(8): o += [f"v_sub_f32 v{E+i}, v{E+i}, v{SM}"]
    o += [f"v_mul_f32 v{VR}, v{E}, v{E}", f"v_mul_f32 v{X}, v{E+1}, v{E+1}"]
    for i in range(2, 8): o += [f"v_fmac_f32 v{VR if i % 2 == 0 else X}, v{E+i}, v{E+i}"]
    o += [f"v_add_f32 v{VR}, v{VR}, v{X}"]
    o += allsum(VR, TM)
    o += [f"v_mul_f32 v{VR}, {f32(1/512)}, v{VR}"] + rb(VR, VR) + [f"v_add_f32 v{VR}, {f32(1e-5)}, v{VR}"] + rb(VR, VR)
    o += [f"v_sqrt_f32 v{VR}, v{VR}", f"v_cvt_pk_bf16_f32 v{VR}, v{SM}, v{VR}"]
    return o

def k1(lead=5, leadb=6):
    a = Asm(); r = R1; L, T, U = r.L, r.T, r.U; sy = Sync(a)
    k1_setup(a, r)
    a.ins.insert(2, Ins("s_load_dwordx2 s[40:41], s[0:1], 0"))
    a.ins.insert(3, Ins("s_load_dwordx2 s[42:43], s[0:1], 88"))
    a.ins.insert(4, Ins("s_memrealtime s[96:97]"))
    if OPT["pf_code"]:
        pre = Asm()
        pre.I("s_getpc_b64 s[98:99]"); pre.raw("L1_pc:")
        pre.I(f"v_lshlrev_b32 v{r.PF+1}, 7, v0")
        pre.I(f"v_min_u32 v{r.PF+1}, L_code_end-L1_pc-4, v{r.PF+1}")
        pre.raw(f"global_load_dword v{r.PF}, v{r.PF+1}, s[98:99]")
        k = [i for i, x in enumerate(a.ins) if x.mn == "v_lshrrev_b32"][0]
        a.ins[k:k] = pre.ins
        a.vmq.append("pf")
    PS = 64
    def piece_sgprs(p):
        dst = PS + 4*p
        a.I(f"s_add_u32 s{dst}, s39, {p}"); a.I(f"s_and_b32 s{dst}, s{dst}, 7")
        a.I(f"s_mul_i32 s{dst+3}, s{dst}, {64*2752}")
        a.I(f"s_lshl_b32 s{dst+1}, s{dst}, 19"); a.I(f"s_add_u32 s{dst+2}, s{dst+1}, {32*8192}")
        a.I(f"s_lshl_b32 s{dst}, s{dst}, 7")
    piece_sgprs(0); piece_sgprs(1)
    a.I("s_lshl_b32 s60, s38, 8"); a.I("s_lshl_b32 s61, s37, 3"); a.I("s_add_u32 s60, s60, s61"); a.I("s_add_u32 s3, s60, s36")
    a.I("s_lshl_b32 s60, s3, 10")
    a.I(f"v_lshlrev_b32 v{r.ST}, 4, v{L}")
    a.I("s_waitcnt lgkmcnt(0)")
    srd(a, 8, 40, 2048*1024); srd(a, 16, 56, 512*2752); srd(a, 12, 52, 512*8192)
    ntw = "nt " if OPT["nt_w"] else ""; ntk = "nt " if OPT["nt_kv"] else ""
    def dma_x(p, j):
        def s(): a.I(f"s_add_u32 m0, s44, {(p%2)*4096 + j*1024}")
        def v():
            sy.dma(("x", p), [("xs", p % 2)])
            a.vm(f"buffer_load_dwordx4 v{r.X0+j}, s[8:11], s{PS+4*p} offen {'nt ' if OPT['nt_x'] else ''}lds", ("x", p))
        return s, v
    def dma_wq(s_):
        def s(): a.I(f"s_add_u32 m0, s45, {WQRING + (s_%NWQ)*8192}")
        def v():
            sy.dma(("wq", s_), [(WQRING + (s_%NWQ)*8192)//8192])
            a.vm(f"buffer_load_dwordx4 v{r.WQ}, s[12:15], s{PS+4*(s_//2)+1+(s_%2)} offen {ntw}lds", ("wq", s_))
        return s, v
    def dma_w1(p):
        def s(): a.I(f"s_add_u32 m0, s45, {W1RING + (p%NW1)*8192}")
        def v():
            sy.dma(("w1", p), [(W1RING + (p%NW1)*8192)//8192])
            a.vm(f"buffer_load_dwordx4 v{r.W1}, s[16:19], s{PS+4*p+3} offen {ntw}lds", ("w1", p))
        return s, v
    def dma_kv(which, i):
        base = (KRING if which == "k" else VRING) + (i % 8)*8192
        def s():
            a.I(f"s_add_u32 s62, s46, {i*8192}"); a.I(f"s_add_u32 m0, s45, {base}")
        def v():
            if base >= XRING: assert "pa_done" in sy.free
            if base == NONCE_LDS: assert "nonce_done" in sy.free
            sy.dma((which, i), [base//8192])
            a.vm(f"buffer_load_dwordx4 v{r.KD if which=='k' else r.VD}, {'s[20:23]' if which=='k' else 's[24:27]'}, s62 offen {ntk}lds", (which, i))
        return s, v
    def now(p): p[0](); p[1]()
    stamp(a, 0)
    for j in range(4): now(dma_x(0, j))
    now(dma_w1(0))
    if OPT["d_nosrow"]: a.I("s_mov_b32 s60, 0x40000000")
    a.vm(f"buffer_load_dwordx4 {vr(U)}, v{r.ST}, s[8:11], s60 offen", "srow")
    if OPT["burst"] == 0: a.wait(vm=("x", 0))
    for j in range(4): now(dma_x(1, j))
    now(dma_w1(1)); now(dma_wq(0))
    a.I("s_or_b32 s96, s96, 1")
    if OPT["d_noat"]: a.I("s_mov_b32 s96, 77")
    a.I(f"v_mov_b32 v{r.BA+2}, s96"); a.I(f"v_mov_b32 v{r.BA+3}, 0"); a.I(f"v_mov_b32 v{r.BA}, 0")
    a.I("s_cmp_eq_u32 s36, 0"); a.I("s_cselect_b64 exec, 1, 0")
    if OPT["d_noat"]: a.I("s_mov_b64 exec, 0"); a.I(f"s_nop 0")
    a.vm(f"global_atomic_cmpswap v{r.BA}, v{r.BA+3}, v[{r.BA+2}:{r.BA+3}], s[42:43] sc0 sc1", "nonce")
    a.I("s_mov_b64 exec, -1")
    for p in range(2, 8): piece_sgprs(p)
    srd(a, 20, 48, 32*2048*256); srd(a, 24, 50, 32*2048*256); srd(a, 32, 58, 2752); srd(a, 28, 54, WS_BYTES)
    k1_setup2(a, r)
    for i in range(4): a.I(f"v_mov_b32 v{r.ONE+i}, 0x3f803f80")
    for k in range(1, 4): a.I(f"v_cmp_eq_u32 s[{52+2*k}:{53+2*k}], {k}, v{T+4}")
    a.I("s_lshl_b32 s60, s38, 4"); a.I("s_lshl_b32 s61, s36, 1"); a.I("s_add_u32 s60, s60, s61")
    a.I(f"s_mul_i32 s61, s60, {43*1024}"); a.I(f"s_add_u32 s61, s61, {HFR}")
    a.I(f"s_lshl_b32 s63, s60, 17"); a.I("s_lshl_b32 s62, s37, 12"); a.I("s_add_u32 s63, s63, s62"); a.I(f"s_add_u32 s63, s63, {OFR}")
    for t in range(3):
        d = 48 + 2*t
        a.I(f"s_add_u32 s{d}, s47, {t}"); a.I(f"s_lshr_b32 s{d+1}, s{d}, 1"); a.I(f"s_lshl_b32 s{d+1}, s{d+1}, 10")
        a.I(f"s_and_b32 s{d}, s{d}, 1"); a.I(f"s_lshl_b32 s{d}, s{d}, 3"); a.I(f"s_add_u32 s{d}, s{d}, s{d+1}"); a.I(f"s_add_u32 s{d}, s{d}, s61")
        a.I(f"s_add_u32 s{d+1}, s{d}, {43*1024}")
    a.I("s_cmp_ge_u32 s37, 22"); a.I("s_cselect_b32 s52, 0x40000000, s52"); a.I("s_cselect_b32 s53, 0x40000000, s53")
    a.I("s_lshl_b32 s42, s2, 15"); a.I("s_lshl_b32 s43, s36, 12"); a.I("s_add_u32 s42, s42, s43"); a.I(f"s_add_u32 s42, s42, {PART}")

    NP = 8
    for s_ in range(16): sy.expect(("wq", s_), 16)
    for p in range(8): sy.expect(("w1", p), 12); sy.expect(("x", p), 4)
    seq = []; units = []
    def unit(name, items): units.append((name, len(seq), len(seq) + len(items))); seq.extend(items)
    for s_ in range(4): unit(("F", s_), [("f", s_, t) for t in range(3)])
    for s_ in range(12): unit(("U", s_), [("q", s_, t) for t in range(8)] + [("f", s_+4, t) for t in range(3)])
    unit(("Q12",), [("a", 0, 8+t) for t in range(3)] + [("q", 12, t) for t in range(8)])
    for tp in range(4):
        unit(("TP", tp), [("q", s_, t) for s_ in (13, 14, 15) for t in (2*tp, 2*tp+1)] + [("a", 0, 2*tp), ("a", 0, 2*tp+1)])
    def chunk(it):
        k, s_, t = it
        return ("wq", s_) if k == "q" else ("w1", s_//2) if k == "f" else "table"
    def reads(n):
        k, s_, t = seq[n]; b = r.POOL + (n % NP)*4
        def g(rd):
            def f():
                sy.read(chunk(seq[n]), ("f", n, rd))
                if k == "q": a.lds(f"ds_read_b64_tr_b16 v[{b+2*rd}:{b+2*rd+1}], v{r.TB+t} offset:{WQRING + (s_%NWQ)*8192 + rd*1024}", ("f", n, rd))
                elif k == "f": a.lds(f"ds_read_b64_tr_b16 v[{b+2*rd}:{b+2*rd+1}], v{r.W1B+t} offset:{((s_//2)%NW1)*8192 + (s_%2)*4096 + rd*512}", ("f", n, rd))
                else: a.lds(f"ds_read_b64 v[{b}:{b+1}], v{U+15} offset:{t*128}", ("f", n, rd))
            return f
        return [g(0), g(1)] if k != "a" else [g(1)]
    def xf(s_, rt): return r.XF + ((s_ % 8)*2 + rt)*4
    def x_read(p, e, rt):
        def f():
            a.wait(vm=("x", p))
            sy.read(("x", p), ("xf", 2*p+e, rt), private=True)
            b = xf(2*p+e, rt)
            a.lds(f"ds_read_b128 v[{b}:{b+3}], v{r.XR+e} offset:{(p%2)*4096 + rt*2048}", ("xf", 2*p+e, rt))
        return f
    def accreg(k, t, rt):
        if k == "a": k, t = ("q", t) if t < 8 else ("f", t - 8)
        return (r.ACC + (t*2 + rt)*4) if k == "q" else (r.FACC + (t*2 + rt)*4)
    for e in range(2):
        for rt in range(2): x_read(0, e, rt)()
    a.wait(vm=[("w1", 0)]); sy.barrier()
    stamp(a, 1)
    for n in range(lead):
        for f in reads(n): f()
    st = Stream(a); st.start()
    first = {}
    ubase = {}
    lab = [0]
    seen_x = set()
    for (name, lo, hi) in units:
        ubase[name] = len(st.m)
        for n in range(lo, hi):
            k, s_, t = seq[n]; b = r.POOL + (n % NP)*4
            first[n] = len(st.m)
            for rt in range(2):
                d = accreg(k, t, rt)
                lg = None
                if rt == 0:
                    lg = [("f", n, 1)]
                    if k != "a" and s_ not in seen_x:
                        lg += [("xf", s_, 0), ("xf", s_, 1)]; seen_x.add(s_)
                if k == "a":
                    i = st.mfma(f"{MF16} {vr(d)}, v[{b}:{b+1}], v[{r.BA+2*rt}:{r.BA+2*rt+1}], {vr(d)}", lg=lg)
                else:
                    i = st.mfma(f"{MF} {vr(d)}, {vr(b)}, {vr(xf(s_, rt))}, {'0' if s_ == 0 else vr(d)}", lg=lg)
            if k != "a" and s_ < 2:
                cs = r.CSQ if k == "q" else r.CSF
                def fcs(t=t, b=b, cs=cs, s_=s_):
                    lab[0] += 1
                    a.I(f"s_cmp_lg_u32 s36, {t}"); a.I(f"s_cbranch_scc1 L1_cs{lab[0]}")
                    a.C(f"{MF} {vr(cs)}, {vr(b)}, {vr(r.ONE)}, {'0' if s_ == 0 else vr(cs)}")
                    a.raw(f"L1_cs{lab[0]}:")
                st.put(i, fcs, "x")
    ubase["end"] = len(st.m)
    NM = len(st.m)
    guarded = {("w1", 0)}
    barpos = {}
    def uname(n):
        for (name, lo, hi) in units:
            if lo <= n < hi: return name
    for n in range(lead, len(seq)):
        g0 = first[n - lead]
        rds = reads(n)
        c = chunk(seq[n])
        pos = g0 + (2 - len(rds))
        if c not in guarded:
            nm = uname(n); idx = [u[0] for u in units].index(nm)
            hi = units[idx][2]
            if nm[0] == "F": hi = units[min(idx + 1, len(units) - 1)][2]
            tags = []
            for m in range(n, hi):
                cc = chunk(seq[m])
                if cc not in guarded and cc not in tags: tags.append(cc)
            if nm == ("TP", 0): tags = [x for x in [("wq", 13), ("wq", 14), ("wq", 15)] if x not in guarded]
            def fb(tags=tags):
                a.wait(vm=[x for x in tags if x != "table"], lg=("tw" if "table" in tags else None))
                sy.barrier()
                if "table" in tags: sy.ready.add("table")
            st.put(pos, fb, "bar"); guarded |= set(tags); barpos[nm] = pos
        for k, f in enumerate(rds): st.put(pos + k, f, "ds")
    def U_(s_): return ("U", s_)
    nxt_unit = {units[i][0]: units[i+1][0] for i in range(len(units) - 1)}
    def bar_in(name):
        lo = ubase[name]; hi = ubase.get(nxt_unit.get(name), NM)
        c = [p for p in barpos.values() if lo <= p < hi]
        return c[-1] if c else None
    cursor = {}
    def place(name, pieces, after=None, step=3):
        g = max(cursor.get(name, ubase[name] + 1), (after + 2) if after is not None else 0)
        for pc in pieces:
            if callable(pc): st.put(g - 1, pc, "salu"); continue
            st.put(g - 1, pc[0], "salu"); st.put(g, pc[1], "vm"); g += step
        cursor[name] = g
    xfree = lambda p: (lambda: sy.private_free(("x", p)))
    place(("F", 0), [dma_wq(1), dma_w1(2)], step=2)
    place(("F", 1), [xfree(0)] + [dma_x(2, j) for j in range(3)], step=2)
    place(("F", 2), [dma_x(2, 3), dma_wq(2), dma_wq(3)], step=2)
    place(("F", 3), [xfree(1), dma_x(3, 0), dma_x(3, 1), dma_wq(4)], step=2)
    place(U_(0), [dma_x(3, 2), dma_x(3, 3)])
    for k, (e, rt) in enumerate([(0, 0), (0, 1), (1, 0), (1, 1)]):
        st.put(ubase[("F", 0)] + 2 + k + (k > 1)*2, x_read(1, e, rt), "x")
        st.put(ubase[U_(0)] + 6 + 2*k, x_read(2, e, rt), "x")
    for p in range(3, 8):
        u = U_(2*p - 5)
        for k, (e, rt) in enumerate([(0, 0), (0, 1), (1, 0), (1, 1)]): st.put(ubase[u] + 2 + 3*k, x_read(p, e, rt), "x")
    place(U_(1), [xfree(2)] + [dma_x(4, j) for j in range(4)])
    for p in range(3, 6): place(U_(2*p - 4), [xfree(p)] + [dma_x(p+2, j) for j in range(4)])
    for s_ in range(1, 12): place(U_(s_), [dma_wq(s_+4)], after=bar_in(U_(s_)))
    place(U_(0), [dma_w1(3)], after=bar_in(U_(0)))
    for p in range(1, 5): place(U_(2*p - 2 + (1 if p == 1 else 0)), [dma_w1(p+3)], after=bar_in(U_(2*p - 2 + (1 if p == 1 else 0))))
    place(U_(11), [dma_kv("k", 0)], step=2)
    place(("Q12",), [dma_kv("k", 1), dma_kv("v", 0), dma_kv("k", 2)], step=2)
    if OPT["pf_kv"] >= 0:
        def pfkv():
            a.I("s_lshl_b32 s60, s38, 3"); a.I("s_add_u32 s60, s60, s36")
            a.I(f"v_lshlrev_b32 v{r.PF+1}, 7, v{L}")
            for (n, sr_) in ((3, "s[20:23]"), (2, "s[24:27]")):
                a.I(f"s_mul_i32 s61, s60, {n*128}"); a.I("s_add_u32 s61, s61, s46")
                a.I(f"s_mov_b64 exec, {(1 << n) - 1}")
                a.vm(f"buffer_load_dword v{r.PF}, v{r.PF+1}, {sr_}, s61 offen", "pf")
            a.I("s_mov_b64 exec, -1")
        st.put(ubase[U_(OPT["pf_kv"])] + 18, pfkv, "x")
    sops = stats_ops(U)
    st.put(0, lambda: a.wait(vm="srow"), "bar")
    st.spread_valu(sops, 0, ubase[U_(1)])
    def nonce_write():
        a.wait(vm="nonce")
        a.I(f"v_cmp_eq_u32 vcc, 0, v{r.BA}"); a.I(f"v_cndmask_b32 v{r.BA}, v{r.BA}, v{r.BA+2}, vcc")
        a.I(f"v_readfirstlane_b32 s60, v{r.BA}"); a.I(f"s_lshl_b32 s61, s36, 2"); a.I(f"s_add_u32 s61, s61, {NONCE_LDS}")
        a.I(f"v_mov_b32 v{r.BA}, s60"); a.I(f"v_mov_b32 v{r.BA+1}, s61")
        a.lds(f"ds_write_b32 v{r.BA+1}, v{r.BA}", "nw")
    b1 = bar_in(U_(1))
    st.put(b1 - 4, nonce_write, "x")
    st.put(b1 - 1, lambda: a.wait(lg="nw"), "x")
    def nonce_read():
        a.I(f"v_mov_b32 v{r.BA+1}, {NONCE_LDS}")
        a.lds(f"ds_read_b32 v{U+15}, v{r.BA+1}", "nr")
    st.put(b1 + 1, nonce_read, "x")
    def publish():
        a.wait(lg="nr")
        sy.free.add("nonce_rd")
        a.I(f"v_readfirstlane_b32 s97, v{U+15}")
        a.I(f"v_cmp_eq_u32 vcc, 0, v{L}"); a.I(f"v_cndmask_b32 v{U}, -1, 0, vcc")
        a.I(f"s_lshl_b32 s60, s3, 3"); a.I(f"s_add_u32 s60, s60, {STATS}")
        a.vm(f"buffer_store_dwordx2 v[{U+14}:{U+15}], v{U}, s[28:31], s60 offen sc1", "pub")
        a.I(f"v_lshlrev_b32 v{U+1}, 2, v{T+2}"); a.I(f"v_add_lshl_u32 v{U+1}, v{U+1}, v{T+4}, 3")
        a.I(f"v_cmp_gt_u32 vcc, 4, v{T+4}"); a.I(f"v_cndmask_b32 v{U+1}, -1, v{U+1}, vcc")
        a.I("s_lshl_b32 s60, s37, 3"); a.I("s_add_u32 s60, s60, s38"); a.I(f"s_mul_i32 s60, s60, {176*8}")
        a.I("s_lshl_b32 s61, s36, 7"); a.I("s_add_u32 s60, s60, s61"); a.I(f"s_add_u32 s60, s60, {CSW}")
        a.I(f"s_add_u32 s61, s60, {128*8}"); a.I("s_cmp_lt_u32 s36, 3"); a.I("s_cselect_b32 s61, s61, 0x40000000")
        for q, (cs, sg) in enumerate(((r.CSQ, 60), (r.CSF, 61))):
            d = U + 2 + 2*q
            a.I(f"v_cndmask_b32 v{d}, v{cs}, v{cs+1}, s[54:55]"); a.I(f"v_cndmask_b32 v{d}, v{d}, v{cs+2}, s[56:57]")
            a.I(f"v_cndmask_b32 v{d}, v{d}, v{cs+3}, s[58:59]"); a.I(f"v_mov_b32 v{d+1}, s97")
            a.vm(f"buffer_store_dwordx2 v[{d}:{d+1}], v{U+1}, s[28:31], s{sg} offen sc1", "pub")
    st.put(ubase[U_(2)] + 5, publish, "x")
    st.put(bar_in(U_(3)), lambda: sy.free.add("nonce_done"), "x")
    SG, CG, B1R, A0, A1, A2 = U, U+4, U+10, U+11, U+12, U+13
    def cons_loads(raw=False):
        em = (lambda t, tag: a.raw(t)) if raw else a.vm
        em(f"buffer_load_dwordx2 v[{SG}:{SG+1}], v{A0}, s[28:31], s60 offen sc1", "cons")
        em(f"buffer_load_dwordx2 v[{SG+2}:{SG+3}], v{A0}, s[28:31], s60 offen offset:128 sc1", "cons")
        for o in range(3): em(f"buffer_load_dwordx2 v[{CG+2*o}:{CG+2*o+1}], v{A1}, s[28:31], s{61 if o < 2 else 40} offen offset:{o*512} sc1", "cons")
    def consume_issue():
        a.I(f"v_lshlrev_b32 v{A0}, 3, v{T+4}")
        a.I("s_lshl_b32 s60, s38, 11"); a.I("s_lshl_b32 s61, s36, 8"); a.I("s_add_u32 s60, s60, s61"); a.I(f"s_add_u32 s60, s60, {STATS}")
        a.I(f"v_lshrrev_b32 v{A1}, 3, v{L}"); a.I(f"v_mul_u32_u24 v{A1}, {176*8}, v{A1}")
        a.I(f"v_and_b32 v{B1R}, 7, v{L}"); a.I(f"v_lshl_add_u32 v{A1}, v{B1R}, 3, v{A1}")
        a.I(f"s_mul_i32 s61, s37, {8*176*8}"); a.I("s_lshl_b32 s62, s36, 6"); a.I("s_add_u32 s61, s61, s62"); a.I(f"s_add_u32 s61, s61, {CSW}")
        a.I("s_cmp_lt_u32 s36, 6"); a.I(f"s_cselect_b32 s62, 0, 1024"); a.I(f"s_sub_u32 s40, s61, s62")
        cons_loads()
        a.I(f"v_lshlrev_b32 v{B1R}, 1, v{B1R}"); a.I("s_lshl_b32 s62, s47, 5"); a.I("s_lshl_b32 s43, s36, 4"); a.I("s_add_u32 s62, s62, s43")
        a.vm(f"buffer_load_ushort v{B1R}, v{B1R}, s[32:35], s62 offen", "cons")
    st.put(ubase[U_(OPT["cons_at"])] + 14, consume_issue, "x")
    def consume_check():
        a.wait(vm="cons")
        a.I("s_mov_b32 s96, 0")
        a.raw("L1_chk:")
        a.I(f"v_xor_b32 v{U+14}, s97, v{SG+1}"); a.I(f"v_xor_b32 v{U+15}, s97, v{SG+3}"); a.I(f"v_or_b32 v{U+14}, v{U+14}, v{U+15}")
        for o in range(3):
            a.I(f"v_xor_b32 v{U+15}, s97, v{CG+2*o+1}"); a.I(f"v_or_b32 v{U+14}, v{U+14}, v{U+15}")
        a.I(f"v_cmp_ne_u32 vcc, 0, v{U+14}")
        a.I("s_add_u32 s96, s96, 1")
        a.I("s_cbranch_vccz L1_chk_ok")
        a.I("s_cmp_gt_u32 s96, 0x4000"); a.I("s_cbranch_scc1 L1_chk_ok")
        a.I("s_sleep 2")
        cons_loads(raw=True)
        a.I("s_waitcnt vmcnt(0)")
        a.I("s_branch L1_chk")
        a.raw("L1_chk_ok:")
        if OPT["stamp"]: a.I("v_writelane_b32 v255, s96, 15")
    uc = U_(OPT["chk_at"])
    st.put(ubase[uc] + 1, consume_check, "x")
    cops = []
    TM = U + 14
    for o in range(3): cops.append(dpp(CG+2*o, "row_ror:8"))
    for sw in ("v_permlane16_swap_b32", "v_permlane32_swap_b32"):
        for o in range(3): cops.append(f"v_mov_b32 v{CG+2*o+1}, v{CG+2*o}")
        for o in range(3): cops.append(f"{sw} v{CG+2*o}, v{CG+2*o+1}")
        for o in range(3): cops.append(f"v_add_f32 v{CG+2*o}, v{CG+2*o}, v{CG+2*o+1}")
    for o in range(3):
        c, d = CG+2*o, CG+2*o+1
        cops += [f"v_cvt_pk_bf16_f32 v{d}, v{c}, v{c}", f"v_lshlrev_b32 v{d}, 16, v{d}", f"v_sub_f32 v{d}, v{c}, v{d}",
                 f"v_cvt_pk_bf16_f32 v{c}, v{c}, v{d}", f"v_and_b32 v{TM}, 0xffff0000, v{c}", f"v_sub_f32 v{d}, v{d}, v{TM}",
                 f"v_cvt_pk_bf16_f32 v{d}, v{d}, 0"]
    cops.append(f"v_lshl_or_b32 v{CG+5}, v{B1R}, 16, v{CG+5}")
    cops += [f"v_lshlrev_b32 v{A0}, 3, v{L}", "s_lshl_b32 s60, s36, 6", f"s_add_u32 s60, s60, {TABLE}", f"v_add_u32 v{A0}, s60, v{A0}"]
    for rt in range(2):
        v = SG + 2*rt; b0 = r.BA + 2*rt
        cops += [f"v_and_b32 v{b0}, 0xffff, v{v}", f"v_xor_b32 v{b0}, 0x8000, v{b0}", f"v_and_b32 v{v}, 0xffff0000, v{v}",
                 f"v_or_b32 v{b0+1}, v{b0}, v{v}", f"v_lshl_or_b32 v{b0}, v{b0}, 16, v{b0}", f"v_rcp_f32 v{r.SC+rt}, v{v}",
                 f"v_cmp_eq_u32 vcc, 0, v{T+2}", f"v_cndmask_b32 v{b0}, 0, v{b0}, vcc", f"v_cndmask_b32 v{b0+1}, 0, v{b0+1}, vcc",
                 f"v_mul_f32 v{r.SC+2+rt}, {f32(CSCALE)}, v{r.SC+rt}"]
    tab_bar = barpos[("Q12",)]
    st.spread_valu(cops, ubase[uc] + 2, tab_bar - 8)
    def table_write():
        assert ("x", 6) in sy.free
        a.I("s_mov_b64 exec, 0xff")
        a.lds(f"ds_write_b64 v{A0}, v[{CG}:{CG+1}]", "tw")
        a.lds(f"ds_write_b64 v{A0}, v[{CG+2}:{CG+3}] offset:512", "tw")
        a.I("s_cmp_lt_u32 s36, 6"); a.I("s_cselect_b64 exec, 0xff, 0")
        a.lds(f"ds_write_b64 v{A0}, v[{CG+4}:{CG+5}] offset:1024", "tw")
        a.I("s_mov_b64 exec, -1")
        a.I(f"v_lshlrev_b32 v{U+15}, 3, v{T+4}"); a.I(f"v_add_u32 v{U+15}, {TABLE}, v{U+15}")
    st.put(tab_bar - 6, table_write, "x")
    def f_ops(t, rt):
        d = r.FACC + (t*2 + rt)*4
        o = [f"v_max_f32 v{d+i}, 0, v{d+i}" for i in range(4)] + [f"v_mul_f32 v{d+i}, v{r.SC+rt}, v{d+i}" for i in range(4)]
        o += [f"v_mul_f32 v{d+i}, v{d+i}, v{d+i}" for i in range(4)]
        o += [f"v_cvt_pk_bf16_f32 v{d}, v{d}, v{d+1}", f"v_cvt_pk_bf16_f32 v{d+1}, v{d+2}, v{d+3}"]
        return o
    def q_ops(tp):
        o = []
        for rt in range(2):
            q = r.QF + (rt*4 + tp)*4
            for hh in range(2):
                d = r.ACC + ((2*tp+hh)*2 + rt)*4
                o += [f"v_mul_f32 v{d+i}, v{r.SC+2+rt}, v{d+i}" for i in range(4)]
                o += [f"v_cvt_pk_bf16_f32 v{q+2*hh}, v{d}, v{d+1}", f"v_cvt_pk_bf16_f32 v{q+2*hh+1}, v{d+2}, v{d+3}"]
        for sw in ("v_permlane32_swap_b32", "v_permlane16_swap_b32"):
            for rt in range(2):
                q = r.QF + (rt*4 + tp)*4
                o += [f"{sw} v{q+i}, v{q+2+i}" for i in range(2)]
        return o
    g0 = ubase[("Q12",)] + 8; g1 = ubase[("TP", 1)] + 2
    n6 = (g1 - g0) // 6
    for k in range(6):
        t, rt = k // 2, k % 2
        lo = g0 + k*n6
        st.spread_valu(f_ops(t, rt), lo, lo + n6)
        d = r.FACC + (t*2 + rt)*4
        st.put(lo + n6, (lambda d=d, k=k: a.vm(f"buffer_store_dwordx2 v[{d}:{d+1}], v{r.ST}, s[28:31], s{48+k} offen", "hst")), "vm")
    for tp in range(3):
        lo = ubase[("TP", tp+1)] + 3; hi = ubase[("TP", tp+2)] if tp < 2 else NM
        st.spread_valu(q_ops(tp), lo, hi)
    if OPT["stamp"]:
        for s_ in (0, 4, 8): st.put(ubase[U_(s_)], (lambda s_=s_: stamp(a, 2 + s_//4)), "x")
        st.put(ubase[("Q12",)], lambda: stamp(a, 5), "x")
    st.emit()
    for o in q_ops(3): a.I(o)
    for t in range(8): a.I(f"v_add_u32 v{r.TB+t}, v{T+3}, v{r.TB+t}")
    for i in range(4): a.I(f"v_mov_b32 v{r.SENT+i}, -1")
    a.wait(vm=[("k", 0), ("k", 1)])
    sy.barrier(); sy.free.add("pa_done")
    for x in [("k", 3), ("v", 1), ("k", 4), ("v", 2)]: now(dma_kv(*x))
    stamp(a, 6)
    kern2.phase_b(a, r, sy, dma_kv, leadb)
    a.raw("L1_end:\ns_endpgm")
    return a.finalize(), a

def build():
    o = """; generated by gen/kern3.py
; @launch kernel=attn_kernel grid=(256,1,1) block=(512,1,1) lds=163840
; @launch kernel=gemm_kernel grid=(256,1,1) block=(512,1,1) lds=131072
.amdgcn_target "amdgcn-amd-amdhsa--gfx950"
.text
"""
    if OPT["d_pre"]:
        o = o.replace("; @launch kernel=attn", "; @launch kernel=pre_kernel grid=(256,1,1) block=(512,1,1) lds=0\n; @launch kernel=attn", 1)
        o += khead("pre_kernel")
        if OPT["d_pre"] == 2:
            o += """  s_load_dwordx2 s[4:5], s[0:1], 0
  v_lshlrev_b32 v1, 4, v0
  s_lshl_b32 s3, s2, 13
  s_waitcnt lgkmcnt(0)
  s_mov_b32 s6, 0x200000
  s_mov_b32 s7, 0x20000
  buffer_load_dwordx4 v[4:7], v1, s[4:7], s3 offen
  s_waitcnt vmcnt(0)
"""
        o += "  s_endpgm\n"
    t, a1 = k1(); o += khead("attn_kernel") + t
    t, a2 = k2(); o += khead("gemm_kernel") + t + "L_code_end:\n"
    o += '.section .rodata,"a"\n' + kd("attn_kernel") + kd("gemm_kernel") + (kd("pre_kernel", 32) if OPT["d_pre"] else "")
    print("nops added:", a1.nops_added, a2.nops_added, file=sys.stderr)
    return o
if __name__ == "__main__":
    for x in sys.argv[2:]:
        k, v = x.split("="); assert k in OPT, k; OPT[k] = int(v)
    open(sys.argv[1], "w").write(build())
```

```python
import sys, math, struct
from asmlib import *
import kern, kern2
from kern import f32, srd, MF, CSCALE, OFR, HFR, PART, WS_BYTES
from kern2 import OPT, stamp, stamp_store, Sync, k1_setup, k1_setup2, KRING, VRING, WQRING, NWQ, W1RING, NW1, XRING
from kern3 import dpp, xsum, allsum, rb, stats_ops

OPT.update(dict(nt_kv=1, rot=7, rotm=0, pf_kv=-1, nonce_at=0, pub_at=2, cons_at=7, chk_at=9, pb_bar=2, pb_k=6, pb_v=4, dsfirst=0, force_slow=0, warm=0, xb_at=18, pf_b2=13))
STATS = 44 << 20
CSW = 45 << 20
TABLE = XRING + 6*8192

SLOW8 = ("v_exp", "v_rcp", "v_sqrt", "v_permlane", "v_log", "v_rsq")
def is8(t): return t.startswith(SLOW8)

class Stream:
    def __init__(self, a):
        self.a = a; self.m = []; self.gap = []; self.pre = []
    def mfma(self, text, lg=None, vm=None):
        self.m.append((text, lg, vm)); self.gap.append([]); return len(self.m) - 1
    def put(self, i, fn, kind="x"):
        if isinstance(fn, str):
            t = fn; fn = (lambda: self.a.I(t))
            if kind == "valu" and OPT["dsfirst"] and not is8(t): kind = "valu2"
        (self.pre if i < 0 else self.gap[i]).append((kind, fn))
    def has(self, i, kind): return any(k == kind for k, _ in self.gap[i])
    def emit(self):
        order = {"bar": 0, "valu": 1, "salu": 2, "ds": 3, "valu2": 3.5, "vm": 4, "x": 5}
        for k, f in self.pre: f()
        for i, (t, lg, vm) in enumerate(self.m):
            self.a.wait(vm=vm, lg=lg)
            self.a.I(t)
            for k, f in sorted(self.gap[i], key=lambda x: order[x[0]]): f()
    def dense(self, ops, lo, hi=None):
        g = lo; k = 0
        while k < len(ops):
            assert g < len(self.m), "ran past stream"
            if is8(ops[k]): self.put(g, ops[k], "valu"); k += 1
            else:
                self.put(g, ops[k], "valu"); k += 1
                if k < len(ops) and not is8(ops[k]): self.put(g, ops[k], "valu"); k += 1
            g += 1
        if hi is not None: assert g <= hi, (g, hi)
        return g

class R1:
    L = 1; X0 = 2; WQ = 6; W1 = 7; KD = 8; VD = 9; XR = 10; TB = 12; W1B = 20; KB = 23; ST = 27
    T = 28
    POOL = 36
    ACC = 68
    FACC = 132
    XF = 156
    ONE = 220
    CSQ = 224; CSF = 228
    BA = 220
    SC = 228
    AD = 232
    U = 236
    PF = 252
    QF = 156; S = 188; P = 132; LS = 148; SENT = 152

def k1(lead=5, leadb=6):
    a = Asm(); r = R1; L, T, U = r.L, r.T, r.U; sy = Sync(a)
    k1_setup(a, r)
    a.ins.insert(2, Ins("s_load_dwordx2 s[40:41], s[0:1], 0"))
    a.ins.insert(3, Ins("s_load_dwordx2 s[42:43], s[0:1], 88"))
    a.ins.insert(4, Ins("s_memrealtime s[96:97]"))
    if OPT["pf_code"]:
        pre = Asm()
        pre.I("s_getpc_b64 s[98:99]"); pre.raw("L1_pc:")
        pre.I(f"v_lshlrev_b32 v{r.PF+1}, 7, v0")
        pre.I(f"v_min_u32 v{r.PF+1}, L_code_end-L1_pc-4, v{r.PF+1}")
        pre.raw(f"global_load_dword v{r.PF}, v{r.PF+1}, s[98:99]")
        k = [i for i, x in enumerate(a.ins) if x.mn == "v_lshrrev_b32"][0]
        a.ins[k:k] = pre.ins
        a.vmq.append("pf")
    PS = 64
    def piece_sgprs(p):
        dst = PS + 4*p
        a.I(f"s_add_u32 s{dst}, s39, {p}"); a.I(f"s_and_b32 s{dst}, s{dst}, 7")
        a.I(f"s_mul_i32 s{dst+3}, s{dst}, {64*2752}")
        a.I(f"s_lshl_b32 s{dst+1}, s{dst}, 19"); a.I(f"s_add_u32 s{dst+2}, s{dst+1}, {32*8192}")
        a.I(f"s_lshl_b32 s{dst}, s{dst}, 7")
    piece_sgprs(0); piece_sgprs(1)
    a.I("s_lshl_b32 s60, s38, 8"); a.I("s_lshl_b32 s61, s37, 3"); a.I("s_add_u32 s60, s60, s61"); a.I("s_add_u32 s3, s60, s36")
    a.I("s_lshl_b32 s60, s3, 10")
    a.I(f"v_lshlrev_b32 v{r.ST}, 4, v{L}")
    a.I("s_waitcnt lgkmcnt(0)")
    srd(a, 8, 40, 2048*1024); srd(a, 16, 56, 512*2752); srd(a, 12, 52, 512*8192)
    ntw = "nt " if OPT["nt_w"] else ""; ntk = "nt " if OPT["nt_kv"] else ""
    def dma_x(p, j):
        def s(): a.I(f"s_add_u32 m0, s44, {(p%2)*4096 + j*1024}")
        def v():
            sy.dma(("x", p), [("xs", p % 2)])
            a.vm(f"buffer_load_dwordx4 v{r.X0+j}, s[8:11], s{PS+4*p} offen lds", ("x", p))
        return s, v
    def dma_wq(s_):
        def s(): a.I(f"s_add_u32 m0, s45, {WQRING + (s_%NWQ)*8192}")
        def v():
            sy.dma(("wq", s_), [(WQRING + (s_%NWQ)*8192)//8192])
            a.vm(f"buffer_load_dwordx4 v{r.WQ}, s[12:15], s{PS+4*(s_//2)+1+(s_%2)} offen {ntw}lds", ("wq", s_))
        return s, v
    def dma_w1(p):
        def s(): a.I(f"s_add_u32 m0, s45, {W1RING + (p%NW1)*8192}")
        def v():
            sy.dma(("w1", p), [(W1RING + (p%NW1)*8192)//8192])
            a.vm(f"buffer_load_dwordx4 v{r.W1}, s[16:19], s{PS+4*p+3} offen {ntw}lds", ("w1", p))
        return s, v
    def dma_kv(which, i):
        base = (KRING if which == "k" else VRING) + (i % 8)*8192
        def s():
            a.I(f"s_add_u32 s62, s46, {i*8192}"); a.I(f"s_add_u32 m0, s45, {base}")
        def v():
            if base >= XRING: assert "pa_done" in sy.free
            sy.dma((which, i), [base//8192])
            a.vm(f"buffer_load_dwordx4 v{r.KD if which=='k' else r.VD}, {'s[20:23]' if which=='k' else 's[24:27]'}, s62 offen {ntk}lds", (which, i))
        return s, v
    def now(p): p[0](); p[1]()
    stamp(a, 0)
    a.vm(f"buffer_load_dwordx4 {vr(U)}, v{r.ST}, s[8:11], s60 offen", "srow")
    for j in range(4): now(dma_x(0, j))
    now(dma_w1(0))
    a.I("s_or_b32 s96, s96, 1"); a.I(f"v_mov_b32 v{r.AD+2}, s96"); a.I(f"v_mov_b32 v{r.AD+1}, 0")
    a.I("s_or_b32 s61, s2, s36"); a.I("s_cselect_b64 exec, 0, 1")
    a.vm(f"global_store_dword v{r.AD+1}, v{r.AD+2}, s[42:43] sc0 sc1", "nst")
    a.I("s_mov_b64 exec, -1")
    for j in range(4): now(dma_x(1, j))
    now(dma_w1(1)); now(dma_wq(0))
    for p in range(2, 8): piece_sgprs(p)
    srd(a, 20, 48, 32*2048*256); srd(a, 24, 50, 32*2048*256); srd(a, 32, 58, 2752); srd(a, 28, 54, WS_BYTES)
    a.I(f"v_lshlrev_b32 v{r.AD}, 2, v{T+2}"); a.I(f"v_add_u32 v{r.AD}, v{r.AD}, v{T+4}")
    a.I(f"v_lshlrev_b32 v{r.AD+1}, 1, v{r.AD}")
    a.I("s_add_u32 s60, s47, s36"); a.I("s_lshl_b32 s60, s60, 5")
    a.I("s_cmp_eq_u32 s38, 0"); a.I("s_cselect_b32 s60, s60, 0x40000000")
    a.vm(f"buffer_load_ushort v{r.AD+3}, v{r.AD+1}, s[32:35], s60 offen", "b1")
    k1_setup2(a, r)
    for i in range(4): a.I(f"v_mov_b32 v{r.ONE+i}, 0x3f803f80")
    for k in range(1, 4): a.I(f"v_cmp_eq_u32 s[{52+2*k}:{53+2*k}], {k}, v{T+4}")
    a.I("s_lshl_b32 s60, s38, 4"); a.I("s_lshl_b32 s61, s36, 1"); a.I("s_add_u32 s60, s60, s61")
    a.I(f"s_mul_i32 s61, s60, {43*1024}"); a.I(f"s_add_u32 s61, s61, {HFR}")
    a.I(f"s_lshl_b32 s63, s60, 17"); a.I("s_lshl_b32 s62, s37, 12"); a.I("s_add_u32 s63, s63, s62"); a.I(f"s_add_u32 s63, s63, {OFR}")
    for t in range(3):
        d = 48 + 2*t
        a.I(f"s_add_u32 s{d}, s47, {t}"); a.I(f"s_lshr_b32 s{d+1}, s{d}, 1"); a.I(f"s_lshl_b32 s{d+1}, s{d+1}, 10")
        a.I(f"s_and_b32 s{d}, s{d}, 1"); a.I(f"s_lshl_b32 s{d}, s{d}, 3"); a.I(f"s_add_u32 s{d}, s{d}, s{d+1}"); a.I(f"s_add_u32 s{d}, s{d}, s61")
        a.I(f"s_add_u32 s{d+1}, s{d}, {43*1024}")
    a.I("s_cmp_ge_u32 s37, 22"); a.I("s_cselect_b32 s52, 0x40000000, s52"); a.I("s_cselect_b32 s53, 0x40000000, s53")
    a.I(f"v_lshlrev_b32 v{r.AD}, 7, v{r.AD}"); a.I(f"v_cmp_gt_u32 vcc, 4, v{T+4}"); a.I(f"v_cndmask_b32 v{r.AD}, -1, v{r.AD}, vcc")
    a.I(f"s_mul_i32 s60, s37, {176*128}"); a.I(f"s_add_u32 s60, s60, {CSW}")
    a.I("s_lshl_b32 s40, s36, 11"); a.I("s_add_u32 s40, s40, s60"); a.I("s_lshl_b32 s61, s38, 4"); a.I("s_add_u32 s40, s40, s61")
    a.I(f"s_add_u32 s41, s40, {128*128}"); a.I("s_cmp_lt_u32 s36, 3"); a.I("s_cselect_b32 s41, s41, 0x40000000")
    a.I("s_lshl_b32 s3, s3, 3"); a.I(f"s_add_u32 s3, s3, {STATS}")
    a.I("s_add_u32 s32, s60, s45"); a.I(f"s_add_u32 s33, s32, 8192"); a.I(f"s_add_u32 s34, s32, 16384")
    a.I("s_cmp_lt_u32 s36, 6"); a.I("s_cselect_b32 s34, s34, s32")
    a.I(f"v_lshlrev_b32 v{r.AD+1}, 3, v{T+4}")
    a.I("s_lshl_b32 s35, s38, 11"); a.I("s_lshl_b32 s61, s36, 8"); a.I("s_add_u32 s35, s35, s61"); a.I(f"s_add_u32 s35, s35, {STATS}")
    a.I(f"v_lshlrev_b32 v{r.AD+2}, 3, v{L}"); a.I("s_lshl_b32 s61, s36, 9"); a.I(f"s_add_u32 s61, s61, {TABLE}"); a.I(f"v_add_u32 v{r.AD+2}, s61, v{r.AD+2}")
    if OPT["warm"]:
        a.vm(f"buffer_load_dword v{r.PF}, v{r.AD}, s[28:31], s40 offen", "pf")
        a.vm(f"buffer_load_dword v{r.PF}, v{r.AD}, s[28:31], s41 offen", "pf")
        a.I("s_mov_b64 exec, 1")
        a.vm(f"buffer_load_dword v{r.PF}, v{r.ST}, s[28:31], s3 offen", "pf")
        a.I("s_mov_b64 exec, -1")
    a.wait(vm="srow")
    for o in stats_ops(U): a.I(o)

    NP = 8
    for s_ in range(16): sy.expect(("wq", s_), 16)
    for p in range(8): sy.expect(("w1", p), 12); sy.expect(("x", p), 4)
    seq = []; units = []
    def unit(name, items): units.append((name, len(seq), len(seq) + len(items))); seq.extend(items)
    for s_ in range(4): unit(("F", s_), [("f", s_, t) for t in range(3)])
    for s_ in range(12): unit(("U", s_), [("q", s_, t) for t in range(8)] + [("f", s_+4, t) for t in range(3)])
    unit(("Q12",), [("a", 0, 8+t) for t in range(3)] + [("q", 12, t) for t in range(8)])
    for tp in range(4):
        unit(("TP", tp), [("q", s_, t) for s_ in (13, 14, 15) for t in (2*tp, 2*tp+1)] + [("a", 0, 2*tp), ("a", 0, 2*tp+1)])
    def chunk(it):
        k, s_, t = it
        return ("wq", s_) if k == "q" else ("w1", s_//2) if k == "f" else "table"
    def reads(n):
        k, s_, t = seq[n]; b = r.POOL + (n % NP)*4
        def g(rd):
            def f():
                sy.read(chunk(seq[n]), ("f", n, rd))
                if k == "q": a.lds(f"ds_read_b64_tr_b16 v[{b+2*rd}:{b+2*rd+1}], v{r.TB+t} offset:{WQRING + (s_%NWQ)*8192 + rd*1024}", ("f", n, rd))
                elif k == "f": a.lds(f"ds_read_b64_tr_b16 v[{b+2*rd}:{b+2*rd+1}], v{r.W1B+t} offset:{((s_//2)%NW1)*8192 + (s_%2)*4096 + rd*512}", ("f", n, rd))
                else: a.lds(f"ds_read_b128 {vr(b)}, v{r.AD+3} offset:{t*1024}", ("f", n, rd))
            return f
        return [g(0), g(1)] if k != "a" else [g(1)]
    def xf(s_, rt): return r.XF + ((s_ % 8)*2 + rt)*4
    def x_read(p, e, rt):
        def f():
            a.wait(vm=("x", p))
            sy.read(("x", p), ("xf", 2*p+e, rt), private=True)
            b = xf(2*p+e, rt)
            a.lds(f"ds_read_b128 v[{b}:{b+3}], v{r.XR+e} offset:{(p%2)*4096 + rt*2048}", ("xf", 2*p+e, rt))
        return f
    def accreg(k, t, rt):
        if k == "a": k, t = ("q", t) if t < 8 else ("f", t - 8)
        return (r.ACC + (t*2 + rt)*4) if k == "q" else (r.FACC + (t*2 + rt)*4)
    for e in range(2):
        for rt in range(2): x_read(0, e, rt)()
    a.wait(vm=[("w1", 0)]); sy.barrier()
    stamp(a, 1)
    for n in range(lead):
        for f in reads(n): f()
    st = Stream(a)
    first = {}; ubase = {}; lab = [0]; seen_x = set()
    for (name, lo, hi) in units:
        ubase[name] = len(st.m)
        for n in range(lo, hi):
            k, s_, t = seq[n]; b = r.POOL + (n % NP)*4
            first[n] = len(st.m)
            for rt in range(2):
                d = accreg(k, t, rt); lg = None
                if rt == 0:
                    lg = [("f", n, 1)]
                    if k != "a" and s_ not in seen_x:
                        lg += [("xf", s_, 0), ("xf", s_, 1)]; seen_x.add(s_)
                bop = vr(r.BA + 4*rt) if k == "a" else vr(xf(s_, rt))
                i = st.mfma(f"{MF} {vr(d)}, {vr(b)}, {bop}, {'0' if (s_ == 0 and k != 'a') else vr(d)}", lg=lg)
            if k != "a" and s_ < 2:
                cs = r.CSQ if k == "q" else r.CSF
                def fcs(t=t, b=b, cs=cs, s_=s_):
                    lab[0] += 1
                    a.I(f"s_cmp_lg_u32 s36, {t}"); a.I(f"s_cbranch_scc1 L1_cs{lab[0]}")
                    a.C(f"{MF} {vr(cs)}, {vr(b)}, {vr(r.ONE)}, {'0' if s_ == 0 else vr(cs)}")
                    a.raw(f"L1_cs{lab[0]}:")
                st.put(i, fcs, "x")
    NM = len(st.m)
    guarded = {("w1", 0)}; barpos = {}
    def uname(n):
        for (name, lo, hi) in units:
            if lo <= n < hi: return name
    for n in range(lead, len(seq)):
        g0 = first[n - lead]; rds = reads(n); c = chunk(seq[n]); pos = g0 + (2 - len(rds))
        if c not in guarded:
            nm = uname(n); idx = [u[0] for u in units].index(nm); hi = units[idx][2]
            if nm[0] == "F": hi = units[min(idx + 1, len(units) - 1)][2]
            tags = []
            for m in range(n, hi):
                cc = chunk(seq[m])
                if cc not in guarded and cc not in tags: tags.append(cc)
            def fb(tags=tags):
                a.wait(vm=[x for x in tags if x != "table"], lg=("tw" if "table" in tags else None))
                sy.barrier()
                if "table" in tags: sy.ready.add("table")
            st.put(pos, fb, "bar"); guarded |= set(tags); barpos[nm] = pos
        for k, f in enumerate(rds): st.put(pos + k, f, "ds")
    def U_(s_): return ("U", s_)
    nxt_unit = {units[i][0]: units[i+1][0] for i in range(len(units) - 1)}
    def bar_in(name):
        lo = ubase[name]; hi = ubase.get(nxt_unit.get(name), NM)
        c = [p for p in barpos.values() if lo <= p < hi]
        return c[-1] if c else None
    cursor = {}
    def place(name, pieces, after=None, step=3):
        g = max(cursor.get(name, ubase[name] + 1), (after + 1) if after is not None else 0)
        for pc in pieces:
            if callable(pc): st.put(g, pc, "salu"); continue
            st.put(g, pc[0], "salu"); st.put(g, pc[1], "vm"); g += step
        cursor[name] = g
    xfree = lambda p: (lambda: sy.private_free(("x", p)))
    place(("F", 0), [dma_wq(1), dma_w1(2)], step=2)
    place(("F", 1), [xfree(0)] + [dma_x(2, j) for j in range(3)], step=2)
    place(("F", 2), [dma_x(2, 3), dma_wq(2), dma_wq(3)], step=2)
    place(("F", 3), [xfree(1), dma_x(3, 0), dma_x(3, 1), dma_wq(4)], step=2)
    place(U_(0), [dma_x(3, 2), dma_x(3, 3)])
    XO = [(0, 0), (0, 1), (1, 0), (1, 1)]
    for k, (e, rt) in enumerate(XO):
        st.put(ubase[("F", 0)] + 2 + k + (k > 1)*2, x_read(1, e, rt), "x")
        st.put(ubase[U_(0)] + 6 + 2*k, x_read(2, e, rt), "x")
    for p in range(3, 8):
        for k, (e, rt) in enumerate(XO): st.put(ubase[U_(2*p - 5)] + 2 + 3*k, x_read(p, e, rt), "x")
    place(U_(1), [xfree(2)] + [dma_x(4, j) for j in range(4)])
    for p in range(3, 6): place(U_(2*p - 4), [xfree(p)] + [dma_x(p+2, j) for j in range(4)])
    for s_ in range(1, 12): place(U_(s_), [dma_wq(s_+4)], after=bar_in(U_(s_)))
    place(U_(0), [dma_w1(3)], after=bar_in(U_(0)))
    for p in range(1, 5):
        u = U_(2*p - 2 + (1 if p == 1 else 0)); place(u, [dma_w1(p+3)], after=bar_in(u))
    place(U_(11), [dma_kv("k", 0)], step=2)
    place(("Q12",), [dma_kv("k", 1), dma_kv("v", 0), dma_kv("k", 2)], step=2)
    vmput = lambda g, t, tag: st.put(g, (lambda: a.vm(t, tag)), "vm")
    if OPT["pf_kv"] >= 0:
        g = ubase[U_(OPT["pf_kv"])] + 13
        st.dense(["s_lshl_b32 s60, s38, 3", "s_add_u32 s60, s60, s36", f"v_lshlrev_b32 v{r.PF+1}, 7, v{L}", f"v_cmp_gt_u32 vcc, 4, v{L}",
                  f"s_lshl_b32 s60, s60, 9", f"v_cndmask_b32 v{r.PF+1}, -1, v{r.PF+1}, vcc", "s_add_u32 s60, s60, s46"], g)
        vmput(g + 5, f"buffer_load_dword v{r.PF}, v{r.PF+1}, s[20:23], s60 offen", "pf")
        vmput(g + 8, f"buffer_load_dword v{r.PF}, v{r.PF+1}, s[24:27], s60 offen", "pf")
    g = ubase[U_(OPT["nonce_at"])] + 13
    st.put(g - 1, f"v_mov_b32 v{U+13}, 0", "valu")
    vmput(g, f"global_load_dword v{U+15}, v{U+13}, s[42:43] sc0 sc1", "nonce")
    def nonce_chk():
        a.wait(vm=["nonce", "b1"])
        a.raw("L1_nchk:")
        a.I(f"v_readfirstlane_b32 s97, v{U+15}"); a.I("s_add_u32 s96, s96, 2")
        a.I("s_cmp_lg_u32 s97, 0"); a.I("s_cbranch_scc1 L1_nok")
        a.C("s_bitcmp1_b32 s96, 15"); a.C("s_cbranch_scc1 L1_nok"); a.C("s_sleep 2")
        a.raw(f"global_load_dword v{U+15}, v{U+13}, s[42:43] sc0 sc1"); a.C("s_waitcnt vmcnt(0)"); a.C("s_branch L1_nchk")
        a.raw("L1_nok:")
    gp = ubase[U_(OPT["pub_at"])]
    st.put(gp - 1, "s_mov_b32 s96, 0", "salu")
    st.put(gp, nonce_chk, "x")
    pops = [f"v_cmp_eq_u32 vcc, 0, v{L}", f"v_cndmask_b32 v{U+13}, -1, 0, vcc"]
    g = st.dense(pops, gp + 1)
    vmput(g, f"buffer_store_dwordx2 v[{U+14}:{U+15}], v{U+13}, s[28:31], s3 offen sc1", "pub")
    for q, (cs, sg) in enumerate(((r.CSQ, 40), (r.CSF, 41))):
        d = U + 4*q; t1 = U + 8
        ops = [f"v_cndmask_b32 v{d}, v{cs}, v{cs+1}, s[54:55]", f"v_mov_b32 v{d+1}, s97", f"v_cndmask_b32 v{d}, v{d}, v{cs+2}, s[56:57]", f"v_mov_b32 v{d+3}, s97",
               f"v_cndmask_b32 v{d}, v{d}, v{cs+3}, s[58:59]",
               f"v_cvt_pk_bf16_f32 v{d+2}, v{d}, v{d}", f"v_lshlrev_b32 v{d+2}, 16, v{d+2}", f"v_sub_f32 v{d+2}, v{d}, v{d+2}",
               f"v_cvt_pk_bf16_f32 v{d}, v{d}, v{d+2}", f"v_and_b32 v{t1}, 0xffff0000, v{d}", f"v_sub_f32 v{d+2}, v{d+2}, v{t1}",
               f"v_cvt_pk_bf16_f32 v{d+2}, v{d+2}, 0"]
        if q == 1: ops.append(f"v_lshl_or_b32 v{d+2}, v{r.AD+3}, 16, v{d+2}")
        g = st.dense(ops, g + 1)
        vmput(g, f"buffer_store_dwordx4 {vr(d)}, v{r.AD}, s[28:31], s{sg} offen sc1", "pub")
    st.dense([f"v_lshlrev_b32 v{r.AD+3}, 6, v{T+4}", f"v_lshl_add_u32 v{r.AD+3}, v{T+2}, 4, v{r.AD+3}", f"v_add_u32 v{r.AD+3}, {TABLE}, v{r.AD+3}"], g + 2)
    CG, SG = U, U + 12
    cl = [f"buffer_load_dwordx4 {vr(CG+4*o)}, v{r.ST}, s[28:31], s{32+o} offen sc1" for o in range(3)] + \
         [f"buffer_load_dwordx2 v[{SG+2*rt}:{SG+2*rt+1}], v{r.AD+1}, s[28:31], s35 offen offset:{128*rt} sc1" for rt in range(2)]
    g = ubase[U_(OPT["cons_at"])] + 8
    for k, t in enumerate(cl): vmput(g + 2*k + (k > 1)*2, t, "cons")
    tagregs = [CG+1, CG+3, CG+5, CG+7, CG+9, CG+11, SG+1, SG+3]
    def chk_ops(t0): return [f"v_min3_u32 v{t0}, v{tagregs[0]}, v{tagregs[1]}, v{tagregs[2]}", f"v_max3_u32 v{t0+1}, v{tagregs[0]}, v{tagregs[1]}, v{tagregs[2]}",
            f"v_min3_u32 v{t0}, v{t0}, v{tagregs[3]}, v{tagregs[4]}", f"v_max3_u32 v{t0+1}, v{t0+1}, v{tagregs[3]}, v{tagregs[4]}",
            f"v_min3_u32 v{t0}, v{t0}, v{tagregs[5]}, v{tagregs[6]}", f"v_max3_u32 v{t0+1}, v{t0+1}, v{tagregs[5]}, v{tagregs[6]}",
            f"v_min3_u32 v{t0}, v{t0}, v{tagregs[7]}, s97", f"v_max3_u32 v{t0+1}, v{t0+1}, v{tagregs[7]}, s97", f"v_cmp_ne_u32 vcc, v{t0}, v{t0+1}"]
    gc = ubase[U_(OPT["chk_at"])] + 1
    st.put(gc - 1, lambda: a.wait(vm="cons"), "x")
    g = st.dense(chk_ops(r.PF), gc)
    def chk_branch():
        a.I("s_cbranch_vccz L1_cok")
        a.C("s_mov_b32 s96, 0")
        a.raw("L1_cretry:")
        a.C("s_sleep 2")
        for t in cl: a.raw(t)
        a.C("s_add_u32 s96, s96, 1"); a.C("s_waitcnt vmcnt(0)")
        for o in chk_ops(r.PF): a.C(o)
        a.C("s_bitcmp1_b32 s96, 14"); a.C("s_cbranch_scc1 L1_cok"); a.C("s_cbranch_vccnz L1_cretry")
        a.raw("L1_cok:")
    st.put(g, chk_branch, "x")
    def tw(o):
        def f():
            assert ("x", 6) in sy.free and ("x", 7) in sy.free
            if o == 2: a.I("s_cmp_lt_u32 s36, 6"); a.I("s_cselect_b64 exec, -1, 0")
            a.lds(f"ds_write2_b32 v{r.AD+2}, v{CG+4*o}, v{CG+4*o+2} offset0:0 offset1:1", "tw")
            if o == 2: a.I("s_mov_b64 exec, -1")
            else: a.I(f"v_add_u32 v{r.AD+2}, 4096, v{r.AD+2}")
        return f
    bops = []
    for rt in range(2):
        v = SG + 2*rt; b0 = r.BA + 4*rt
        bops += [f"v_and_b32 v{b0}, 0xffff, v{v}", f"v_and_b32 v{v}, 0xffff0000, v{v}", f"v_xor_b32 v{b0}, 0x8000, v{b0}", f"v_rcp_f32 v{r.SC+rt}, v{v}",
                 f"v_or_b32 v{b0+1}, v{b0}, v{v}", f"v_lshl_or_b32 v{b0}, v{b0}, 16, v{b0}", f"v_mov_b32 v{b0+3}, v{b0+1}", f"v_mov_b32 v{b0+2}, v{b0}",
                 f"v_mul_f32 v{r.SC+2+rt}, {f32(CSCALE)}, v{r.SC+rt}"]
    st.dense(bops, g + 1)
    tab_bar = barpos[("Q12",)]
    twbar = bar_in(U_(10))
    st.put(twbar, lambda: (sy.private_free(("x", 6)), sy.private_free(("x", 7))), "x")
    for o in range(3): st.put(twbar + 2 + 2*o, tw(o), "x")
    assert twbar + 8 < tab_bar
    def f_ops(t, rt):
        d = r.FACC + (t*2 + rt)*4
        o = [f"v_max_f32 v{d+i}, 0, v{d+i}" for i in range(4)] + [f"v_mul_f32 v{d+i}, v{r.SC+rt}, v{d+i}" for i in range(4)]
        o += [f"v_mul_f32 v{d+i}, v{d+i}, v{d+i}" for i in range(4)]
        o += [f"v_cvt_pk_bf16_f32 v{d}, v{d}, v{d+1}", f"v_cvt_pk_bf16_f32 v{d+1}, v{d+2}, v{d+3}"]
        return o
    def q_ops(tp):
        o = []
        for rt in range(2):
            q = r.QF + (rt*4 + tp)*4
            for hh in range(2):
                d = r.ACC + ((2*tp+hh)*2 + rt)*4
                o += [f"v_mul_f32 v{d+i}, v{r.SC+2+rt}, v{d+i}" for i in range(4)]
                o += [f"v_cvt_pk_bf16_f32 v{q+2*hh}, v{d}, v{d+1}", f"v_cvt_pk_bf16_f32 v{q+2*hh+1}, v{d+2}, v{d+3}"]
        for sw in ("v_permlane32_swap_b32", "v_permlane16_swap_b32"):
            for rt in range(2):
                q = r.QF + (rt*4 + tp)*4
                o += [f"{sw} v{q+i}, v{q+2+i}" for i in range(2)]
        return o
    g = ubase[("Q12",)] + 4
    work = [("F", k) for k in range(6)] + [("Q", tp) for tp in range(4)]
    pend = []
    order = [("F", 0), ("F", 1), ("F", 2), ("F", 3), ("F", 4), ("Q", 0), ("F", 5), ("Q", 1), ("Q", 2), ("Q", 3)]
    left = []
    for w in order:
        if w[0] == "F":
            t, rt = w[1] // 2, w[1] % 2
            ops = f_ops(t, rt); ready = ubase[("Q12",)] + 2*t + rt + 3
            d = r.FACC + (t*2 + rt)*4
            fin = f"buffer_store_dwordx2 v[{d}:{d+1}], v{r.ST}, s[28:31], s{48+w[1]} offen"
        else:
            ops = q_ops(w[1]); fin = None
            ready = (ubase[("TP", w[1]+1)] + 2) if w[1] < 3 else NM
        g = max(g, ready)
        k = 0
        while k < len(ops) and g < NM and not left:
            n = 1 if is8(ops[k]) or k + 1 >= len(ops) or is8(ops[k+1]) else 2
            for o in ops[k:k+n]: st.put(g, o, "valu")
            k += n; g += 1
        if k < len(ops) or left:
            left += ops[k:] + ([("vm", fin)] if fin else [])
        elif fin:
            if g < NM: vmput(g, fin, "hst")
            else: left.append(("vm", fin))
    if OPT["stamp"]:
        for s_ in (0, 4, 8): st.put(ubase[U_(s_)], (lambda s_=s_: stamp(a, 2 + s_//4)), "x")
        st.put(ubase[("Q12",)], lambda: stamp(a, 5), "x")
    st.emit()
    print("PA leftover ops:", len(left), file=sys.stderr)
    a.I("s_load_dwordx2 s[94:95], s[0:1], 72")
    for o in left:
        if isinstance(o, tuple): a.vm(o[1], "hst")
        else: a.I(o)
    for t in range(8): a.I(f"v_add_u32 v{r.TB+t}, v{T+3}, v{r.TB+t}")
    a.wait(vm=[("k", 0), ("k", 1)]); a.wait_all(vm=False)
    sy.barrier(); sy.free.add("pa_done")
    stamp(a, 6)
    phase_b(a, r, sy, dma_kv, leadb)
    a.raw("L1_end:\ns_endpgm")
    slow_path(a, r)
    return a.finalize(), a

def phase_b(a, r, sy, dma_kv, leadb):
    T = r.T; NP = 8; KL, VL = OPT["pb_k"], OPT["pb_v"]
    seq = [("k", 0, j) for j in range(8)]
    for i in range(17):
        if i + 1 < 16: seq += [("k", i+1, j) for j in range(8)]
        if i >= 1: seq += [("v", i-1, j) for j in range(8)]
    for i in range(16): sy.expect(("k", i), 8); sy.expect(("v", i), 16)
    def reads(n):
        kind, i, j = seq[n]; b = r.POOL + (n % NP)*4
        if kind == "k":
            def f():
                sy.read(("k", i), ("g", n, 1))
                a.lds(f"ds_read_b128 {vr(b)}, v{r.KB + j%4} offset:{KRING + (i%8)*8192 + (j//4)*4096}", ("g", n, 1))
            return [f]
        def g(rd):
            def f():
                sy.read(("v", i), ("g", n, rd))
                a.lds(f"ds_read_b64_tr_b16 v[{b+2*rd}:{b+2*rd+1}], v{r.TB+j} offset:{(i%8)*8192 + rd*4096}", ("g", n, rd))
            return f
        return [g(0), g(1)]
    def Sreg(i, rt, kt): return r.S + (i % 2)*16 + (rt*2 + kt)*4
    def Preg(i, rt): return r.P + (i % 2)*8 + rt*4
    def E(i, k): s = r.S + (i % 2)*16 + k; return f"v_exp_f32 v{s}, v{s}"
    def A(i, k):
        s = r.S + (i % 2)*16 + k; l = r.LS + (k // 8)*2 + k % 2
        return f"v_mov_b32 v{l}, v{s}" if (i == 0 and k % 8 < 2) else f"v_add_f32 v{l}, v{l}, v{s}"
    def C(i, k): s = r.S + (i % 2)*16 + 2*k; return f"v_cvt_pk_bf16_f32 v{r.P + (i % 2)*8 + k}, v{s}, v{s+1}"
    for n in range(leadb):
        for f in reads(n): f()
    steps = [(-1, 8)] + [(i, (8 if i + 1 < 16 else 0) + (8 if i >= 1 else 0)) for i in range(17)]
    st = Stream(a)
    guarded = {("k", 0), ("k", 1)}; PBAR = OPT["pb_bar"]; n = 0
    sbase = {}
    for (i, cnt) in steps:
        sbase[i] = len(st.m)
        for fi in range(cnt):
            kind, ii, j = seq[n]; b = r.POOL + (n % NP)*4
            nn = n + leadb
            rds = reads(nn) if nn < len(seq) else []
            for rt in range(2):
                if kind == "k":
                    kt, ks = j // 4, j % 4; d = Sreg(ii, rt, kt)
                    m = st.mfma(f"{MF} {vr(d)}, {vr(b)}, {vr(r.QF + (rt*4+ks)*4)}, {'0' if ks == 0 else vr(d)}", lg=("g", n, 1) if rt == 0 else None)
                else:
                    d = r.ACC + (j*2 + rt)*4
                    m = st.mfma(f"{MF} {vr(d)}, {vr(b)}, {vr(Preg(ii, rt))}, {'0' if ii == 0 else vr(d)}", lg=("g", n, 1) if rt == 0 else None)
                k0 = 2 - len(rds)
                if rt >= k0:
                    if rt == k0 and seq[nn][:2] not in guarded:
                        k2_, i2, _ = seq[nn]; tags = []
                        if k2_ == "k":
                            for u in range(PBAR):
                                if i2 + u < 16: tags.append(("k", i2 + u))
                                if 0 <= i2 + u - 2 < 16: tags.append(("v", i2 + u - 2))
                            if i2 + PBAR >= 16: tags += [("v", x) for x in range(i2 + PBAR - 2, 16)]
                        else: tags = [("v", x) for x in range(i2, 16)]
                        def fb(tags=tags):
                            a.wait(vm=tags); sy.barrier()
                        st.put(m, fb, "bar"); guarded |= set(tags)
                    st.put(m, rds[rt - k0], "ds")
            n += 1
    sbase[17] = len(st.m)
    V = lambda g, t: st.put(g, t, "valu")
    head = [("k", x) for x in range(3, KL)] + [("v", x) for x in range(1, VL)]
    head.sort(key=lambda x: x[1] - (2 if x[0] == "k" else 0))
    for k, x in enumerate(head):
        pc = dma_kv(*x); g = sbase[-1] + 1 + 2*k
        st.put(g, pc[0], "salu"); st.put(g, pc[1], "vm")
    setup = [f"v_mov_b32 v{r.SENT+i}, -1" for i in range(4)] + [
        "s_and_b32 s60, s2, 7", "s_lshr_b32 s60, s60, 1", f"s_mul_i32 s61, s60, {43*32768}", "s_lshr_b32 s43, s2, 3", f"s_mul_i32 s43, s43, {43*1024}",
        f"v_lshlrev_b32 v{r.PF+1}, 7, v{r.L}", f"v_add_u32 v{r.PF+1}, s45, v{r.PF+1}", f"v_cmp_gt_u32 vcc, 8, v{r.L}", f"s_mov_b32 s10, {4096*1024}", f"v_cndmask_b32 v{r.PF+1}, -1, v{r.PF+1}, vcc",
        "s_lshl_b32 s42, s2, 15", "s_lshl_b32 s3, s36, 12", "s_add_u32 s42, s42, s3", f"s_add_u32 s42, s42, {PART}"]
    g = st.dense(setup, sbase[-1])
    def sel():
        a.I("s_cmp_eq_u32 s60, 3"); a.I("s_cselect_b32 s8, s6, s4"); a.I("s_cselect_b32 s9, s7, s5")
        a.I(f"s_cselect_b32 s10, {1376*1024}, s10"); a.I("s_cselect_b32 s61, 0, s61"); a.I("s_mov_b32 s11, 0x20000"); a.I("s_add_u32 s43, s43, s61")
    st.put(g, sel, "x")
    for i in range(16):
        base = sbase[i]; cnt = sbase[i+1] - base
        extra = []
        if i + KL < 16: extra.append(dma_kv("k", i + KL))
        if i + VL < 16: extra.append(dma_kv("v", i + VL))
        if cnt == 32:
            for k in range(16): V(base + 2*k, E(i, k))
            for b in range(4):
                g = base + 8*b
                if b > 0:
                    V(g + 1, A(i, 4*b-2)); V(g + 1, A(i, 4*b-1)); V(g + 3, C(i, 2*b-2)); V(g + 3, C(i, 2*b-1))
                V(g + 5, A(i, 4*b)); V(g + 5, A(i, 4*b+1))
            nb = sbase[i+1]
            V(nb + 1, A(i, 14)); V(nb + 1, A(i, 15))
            if i + 1 < 15: V(nb + 3, C(i, 6)); V(nb + 3, C(i, 7))
            else: V(base + 31, C(i, 6)); V(nb - 1, C(i, 7))
            sites = [base + 7, base + 23, base + 15, base + 31]
        else:
            ops = []
            for k in range(16):
                ops.append(E(i, k))
                if k >= 1: ops.append(A(i, k-1))
                if k >= 2 and k % 2 == 0: ops.append(C(i, (k-2)//2))
            ops += [A(i, 15), C(i, 7)]
            g0 = base + (2 if i == 0 else 2); per = -(-len(ops) // (cnt - 2))
            for k, o in enumerate(ops): V(min(g0 + k // per, base + cnt - 1), o)
            sites = [base + 3, base + 9, base + 6, base + 12]
        for k, pc in enumerate(extra):
            st.put(sites[k], pc[0], "salu"); st.put(sites[k], pc[1], "vm")
        if OPT["pf_w"] >= 0 and i >= OPT["pf_w"] and (i - OPT["pf_w"]) % OPT["pf_ws"] == 0 and (i - OPT["pf_w"]) // OPT["pf_ws"] < 6:
            st.put(sites[2], lambda: a.vm(f"buffer_load_dword v{r.PF}, v{r.PF+1}, s[8:11], s43 offen", "pf"), "vm")
            st.put(sites[3], "s_add_u32 s43, s43, 8192", "salu")
        if i == OPT["pf_b2"]:
            def pfb2():
                a.I(f"v_lshlrev_b32 v{r.T}, 7, v{r.L}"); a.I("s_mov_b64 exec, 0xff")
                a.vm(f"global_load_dword v{r.PF}, v{r.T}, s[94:95]", "pf")
                a.I("s_mov_b64 exec, -1")
            st.put(sites[2], pfb2, "x")
        if OPT["fill_at"] <= i < OPT["fill_at"] + 4:
            k = i - OPT["fill_at"]
            st.put(sites[3], (lambda k=k: a.vm(f"buffer_store_dwordx4 {vr(r.SENT)}, v{r.ST}, s[28:31], s42 offen offset:{k*1024}", "fill")), "vm")
        if i in (4, 8, 12) and OPT["stamp"]: st.put(base, (lambda i=i: stamp(a, 6 + i//4)), "x")
    lo = [f"v_add_f32 v{r.LS}, v{r.LS}, v{r.LS+1}", f"v_add_f32 v{r.LS+2}, v{r.LS+2}, v{r.LS+3}"]
    for sw in ("v_permlane16_swap_b32", "v_permlane32_swap_b32"):
        lo += [f"v_mov_b32 v{r.LS+1}, v{r.LS}", f"v_mov_b32 v{r.LS+3}, v{r.LS+2}", f"{sw} v{r.LS}, v{r.LS+1}", f"{sw} v{r.LS+2}, v{r.LS+3}",
               f"v_add_f32 v{r.LS}, v{r.LS}, v{r.LS+1}", f"v_add_f32 v{r.LS+2}, v{r.LS+2}, v{r.LS+3}"]
    lo += [f"v_max_f32 v{T}, v{r.LS}, v{r.LS+2}", f"v_min_f32 v{T+1}, v{r.LS}, v{r.LS+2}", f"v_add_f32 v{T+5}, v{r.LS}, v{r.LS+2}",
           f"v_cmp_nle_f32 vcc, v{T}, s60", f"v_cmp_nge_f32 s[64:65], v{T+1}, s61", f"v_cmp_u_f32 s[66:67], v{T+5}, v{T+5}"]
    st.put(sbase[16], f"s_mov_b32 s60, {f32(2.0**40)}", "salu"); st.put(sbase[16], f"s_mov_b32 s61, {f32(2.0**-40)}", "salu")
    st.dense(lo, sbase[16] + 1, sbase[17])
    st.emit()
    stamp(a, 10)
    a.I("s_or_b64 vcc, vcc, s[64:65]"); a.I("s_or_b64 vcc, vcc, s[66:67]")
    a.I("s_cbranch_scc1 L1_slow" if not OPT["force_slow"] else "s_branch L1_slow")
    a.raw("L1_norm:")
    for rt in range(2): a.I(f"v_rcp_f32 v{T+rt}, v{r.LS+rt*2}")
    for rt in range(2):
        for ks in range(4):
            o = r.QF + (rt*4 + ks)*4
            for hh in range(2):
                d = r.ACC + ((2*ks+hh)*2 + rt)*4
                for i in range(4): a.I(f"v_mul_f32 v{d+i}, v{T+rt}, v{d+i}")
                a.I(f"v_cvt_pk_bf16_f32 v{o+2*hh}, v{d}, v{d+1}")
                a.I(f"v_cvt_pk_bf16_f32 v{o+2*hh+1}, v{d+2}, v{d+3}")
            if ks == 0 and rt == 1: a.I(f"s_add_u32 s63, s63, {128*1024}")
            a.vm(f"buffer_store_dwordx4 {vr(o)}, v{r.ST}, s[28:31], s63 offen offset:{ks*1024}")
    stamp(a, 11)
    if OPT["stamp"]: a.wait_all()
    stamp(a, 12); stamp_store(a, 1, 28)

def slow_path(a, r):
    T = r.T; KA, VA, VA2, M, NEG = T+5, T+6, T+7, r.LS, r.SENT
    NEG = r.U; S = r.S; P = r.P
    a.raw("L1_slow:")
    a.I("s_waitcnt vmcnt(0) lgkmcnt(0)"); a.I("s_nop 15")
    a.I(f"v_lshlrev_b32 v{KA}, 8, v{T+4}"); a.I(f"v_lshl_add_u32 v{KA}, v{T+2}, 4, v{KA}")
    a.I(f"v_add_u32 v{T}, 4096, v{KA}")
    a.I(f"v_lshlrev_b32 v{VA}, 10, v{T+2}"); a.I(f"v_lshl_add_u32 v{VA}, v{T+4}, 1, v{VA}")
    a.I(f"v_add_u32 v{VA2}, 4096, v{VA}")
    def qk(cinit):
        for j in range(8):
            a.raw(f"buffer_load_dwordx4 {vr(r.POOL+4*j)}, v{KA if j < 4 else T}, s[20:23], s62 offen offset:{(j%4)*64}")
        a.I("s_waitcnt vmcnt(0)")
        for j in range(8):
            kt, ks = j // 4, j % 4
            for rt in range(2):
                d = S + (rt*2 + kt)*4
                c = vr(d) if ks else (vr(NEG + 4*rt) if cinit else "0")
                a.I(f"{MF} {vr(d)}, {vr(r.POOL+4*j)}, {vr(r.QF + (rt*4+ks)*4)}, {c}")
        a.I("s_nop 7")
    for rt in range(2): a.I(f"v_mov_b32 v{M+2*rt}, 0xff800000")
    a.I("s_mov_b32 s62, s46"); a.I("s_mov_b32 s60, 16")
    a.raw("L1_s1:")
    qk(False)
    for rt in range(2):
        for k in range(0, 8, 2): a.I(f"v_max3_f32 v{M+2*rt}, v{M+2*rt}, v{S+8*rt+k}, v{S+8*rt+k+1}")
    a.I("s_add_u32 s62, s62, 8192"); a.I("s_sub_u32 s60, s60, 1"); a.I("s_cmp_lg_u32 s60, 0"); a.I("s_cbranch_scc1 L1_s1")
    for sw in ("v_permlane16_swap_b32", "v_permlane32_swap_b32"):
        for rt in range(2):
            a.I(f"v_mov_b32 v{M+2*rt+1}, v{M+2*rt}"); a.I(f"{sw} v{M+2*rt}, v{M+2*rt+1}"); a.I(f"v_max_f32 v{M+2*rt}, v{M+2*rt}, v{M+2*rt+1}")
    for rt in range(2):
        for i in range(4): a.I(f"v_sub_f32 v{NEG+4*rt+i}, 0, v{M+2*rt}")
    for i in range(64): a.I(f"v_mov_b32 v{r.ACC+i}, 0")
    for rt in range(2): a.I(f"v_mov_b32 v{M+2*rt}, 0")
    a.I("s_mov_b32 s62, s46"); a.I("s_mov_b32 s60, 16")
    a.raw("L1_s2:")
    qk(True)
    for k in range(16): a.I(f"v_exp_f32 v{S+k}, v{S+k}")
    for k in range(16): a.I(f"v_add_f32 v{M+2*(k//8)}, v{M+2*(k//8)}, v{S+k}")
    for k in range(8): a.I(f"v_cvt_pk_bf16_f32 v{P+k}, v{S+2*k}, v{S+2*k+1}")
    for t0 in range(0, 8, 2):
        for t in (t0, t0 + 1):
            for j in range(8):
                a.raw(f"buffer_load_ushort v{S+16+8*(t-t0)+j}, v{VA if j < 4 else VA2}, s[24:27], s62 offen offset:{(j%4)*256 + t*32}")
        a.I("s_waitcnt vmcnt(0)")
        for t in (t0, t0 + 1):
            for j in range(4): a.I(f"v_lshl_or_b32 v{r.POOL+4*t+j}, v{S+16+8*(t-t0)+2*j+1}, 16, v{S+16+8*(t-t0)+2*j}")
    for t in range(8):
        for rt in range(2):
            d = r.ACC + (t*2 + rt)*4
            a.I(f"{MF} {vr(d)}, {vr(r.POOL+4*t)}, {vr(P+4*rt)}, {vr(d)}")
    a.I("s_add_u32 s62, s62, 8192"); a.I("s_sub_u32 s60, s60, 1"); a.I("s_cmp_lg_u32 s60, 0"); a.I("s_nop 7"); a.I("s_cbranch_scc1 L1_s2")
    for sw in ("v_permlane16_swap_b32", "v_permlane32_swap_b32"):
        for rt in range(2):
            a.I(f"v_mov_b32 v{M+2*rt+1}, v{M+2*rt}"); a.I(f"{sw} v{M+2*rt}, v{M+2*rt+1}"); a.I(f"v_add_f32 v{M+2*rt}, v{M+2*rt}, v{M+2*rt+1}")
    a.I("s_nop 7")
    a.I("s_branch L1_norm")

def build():
    o = """; generated by gen/kern4.py
; @launch kernel=attn_kernel grid=(256,1,1) block=(512,1,1) lds=163840
; @launch kernel=gemm_kernel grid=(256,1,1) block=(512,1,1) lds=131072
.amdgcn_target "amdgcn-amd-amdhsa--gfx950"
.text
"""
    t, a1 = k1(); o += khead("attn_kernel") + t
    t, a2 = kern2.k2(); o += khead("gemm_kernel") + t + "L_code_end:\n"
    o += '.section .rodata,"a"\n' + kd("attn_kernel") + kd("gemm_kernel")
    print("nops added:", a1.nops_added, a2.nops_added, file=sys.stderr)
    return o
if __name__ == "__main__":
    for x in sys.argv[2:]:
        k, v = x.split("="); assert k in OPT, k; OPT[k] = int(v)
    open(sys.argv[1], "w").write(build())
```

```python
import sys, math, struct
from asmlib import *
import kern
from kern import f32, srd, allsum64, rbf, MF, CSCALE, XN_OFF, OFR, HFR, PART, WS_BYTES

OPT = dict(stamp=0, nt_w=1, nt_kv=0, pf_kv=-1, pf_w=1, pf_ws=2, k2_init=3, rot=7, rotm=2, nt_x=0, burst=1, poll_sleep=2, k2_plain=0, xb_at=17, pf_code=1, pf_kv_nt=0, k2_dep=4, k2_bar=1, pb_bar=1, fill_at=1, wg2=0)
STAMP_OFF = 200 << 20
def stamp(a, idx, vreg=255):
    if not OPT["stamp"]: return
    a.I("s_memrealtime s[98:99]"); a.I("s_memtime s[100:101]")
    a.wait_all(vm=False)
    a.I(f"v_writelane_b32 v{vreg}, s98, {idx}")
    a.I(f"v_writelane_b32 v{vreg}, s100, {idx+16}")
def stamp_store(a, kidx, srdreg, vreg=255, tmp=254):
    if not OPT["stamp"]: return
    a.I(f"v_lshrrev_b32 v{tmp}, 6, v0"); a.I(f"v_readfirstlane_b32 s98, v{tmp}")
    a.I(f"s_lshl_b32 s99, s2, 3"); a.I("s_add_u32 s98, s98, s99"); a.I("s_lshl_b32 s98, s98, 7")
    a.I(f"s_add_u32 s98, s98, {STAMP_OFF + kidx*2048*128}")
    a.I(f"v_and_b32 v{tmp}, 63, v0"); a.I(f"v_lshlrev_b32 v{tmp}, 2, v{tmp}")
    a.I("s_mov_b64 exec, 0xffffffff")
    a.vm(f"buffer_store_dword v{vreg}, v{tmp}, s[{srdreg}:{srdreg+3}], s98 offen")

class Sync:
    def __init__(self, a):
        self.a = a; self.ready = set(); self.free = set(); self.occ = {}; self.reads = {}; self.nreads = {}; self.issued = []
    def dma(self, chunk, slots):
        for s in slots:
            prev = self.occ.get(s)
            assert prev is None or prev == chunk or prev in self.free, ("slot not free", chunk, s, prev)
            self.occ[s] = chunk
        if chunk not in self.issued: self.issued.append(chunk)
    def expect(self, chunk, n): self.nreads[chunk] = n
    def read(self, chunk, tag, private=False):
        if private: assert self.a.vm_is_done(chunk), ("private chunk not waited", chunk)
        else: assert chunk in self.ready, ("chunk not ready", chunk)
        self.reads.setdefault(chunk, []).append(tag)
    def reads_done(self, c):
        rs = self.reads.get(c, [])
        return len(rs) >= self.nreads.get(c, 10**9) and all(self.a.lg_is_done(t) for t in rs)
    def private_free(self, c):
        assert self.reads_done(c), ("private chunk reads not done", c)
        self.free.add(c)
    def barrier(self):
        self.a.I("s_barrier")
        for c in self.issued:
            if self.a.vm_is_done(c): self.ready.add(c)
            if self.reads_done(c): self.free.add(c)

class Stream:
    def __init__(self, a):
        self.a = a; self.m = []; self.gap = []
    def mfma(self, text, lg=None, vm=None):
        self.m.append((text, lg, vm)); self.gap.append([]); return len(self.m) - 1
    def put(self, i, fn, kind="x"):
        if i < 0: self.pre.append((kind, fn))
        else: self.gap[i].append((kind, fn))
    pre = None
    def start(self): self.pre = []
    def has(self, i, kind): return any(k == kind for k, _ in self.gap[i])
    def emit(self):
        order = {"bar": 0, "ds": 1, "salu": 2, "vm": 3, "valu": 4, "x": 5}
        for k, f in (self.pre or []): f()
        for i, (t, lg, vm) in enumerate(self.m):
            self.a.wait(vm=vm, lg=lg)
            self.a.I(t)
            for k, f in sorted(self.gap[i], key=lambda x: order[x[0]]): f()
    def spread_valu(self, ops, lo, hi, cost=None):
        cost = cost or (lambda s: 2.0 if s.startswith("v_exp") or s.startswith("v_rcp") else 1.0)
        tot = sum(cost(o) for o in ops); acc = 0.0; k = 0; n = hi - lo
        for g in range(lo, hi):
            tgt = tot*(g - lo + 1)/n
            while k < len(ops) and (acc + cost(ops[k])/2 <= tgt or g == hi - 1):
                self.put(g, (lambda t=ops[k]: self.a.I(t)), "valu"); acc += cost(ops[k]); k += 1

class R2:
    L = 1; WD = 2; ST = 4; XO = 5; T = 6
    TB = 16
    POOL = 32
    ACC = 64
    BF = 128
    XB = 192
NSLOT2 = 8
NB2 = 8

def k2(lead=5):
    a = Asm(); r = R2; L, T = r.L, r.T; sy = Sync(a)
    a.raw("""
s_cmp_ge_u32 s2, 256
s_cbranch_scc1 L2_end
s_load_dwordx2 s[48:49], s[0:1], 32
s_load_dwordx2 s[50:51], s[0:1], 64
s_load_dwordx2 s[54:55], s[0:1], 96
s_load_dwordx2 s[56:57], s[0:1], 0
s_load_dwordx4 s[64:67], s[0:1], 72
""")
    kern.k2_common(a)
    a.raw("""
s_lshr_b32 s41, s36, 2
s_and_b32 s42, s36, 3
s_lshl_b32 s45, s36, 10
""")
    a.I(f"v_lshrrev_b32 v{T+2}, 4, v{L}"); a.I(f"v_and_b32 v{T+4}, 15, v{L}")
    a.I("s_lshl_b32 s61, s36, 2"); a.I(f"v_add_u32 v{T+3}, s61, v{T+2}")
    a.I(f"v_and_b32 v{T+5}, 7, v{T+3}"); a.I(f"v_lshlrev_b32 v{T+5}, 1, v{T+5}"); a.I(f"v_xor_b32 v{T+5}, v{T+5}, v{T+4}")
    a.I(f"v_lshlrev_b32 v{T+5}, 4, v{T+5}"); a.I(f"v_lshl_add_u32 v{r.WD}, v{T+3}, 10, v{T+5}")
    a.I("s_lshl_b32 s61, s39, 8"); a.I(f"v_add_u32 v{r.WD}, s61, v{r.WD}")
    a.I(f"v_lshlrev_b32 v{r.ST}, 4, v{L}")
    a.raw(f"""
s_mul_i32 s43, s38, {43*32768}
s_lshl_b32 s60, s37, 3
s_lshl_b32 s61, s42, 1
s_add_u32 s60, s60, s61
s_lshl_b32 s44, s60, 7
s_mul_i32 s61, s38, 43
s_add_u32 s44, s44, s61
s_add_u32 s44, s44, s41
s_lshl_b32 s44, s44, 10
s_add_u32 s44, s44, {OFR}
s_mul_i32 s61, s60, 43
s_add_u32 s61, s61, s41
s_lshl_b32 s61, s61, 10
s_add_u32 s61, s61, {HFR}
s_mov_b32 s46, {128*1024}
s_cmp_eq_u32 s38, 3
s_cselect_b32 s43, 0, s43
s_cselect_b32 s44, s61, s44
s_cselect_b32 s46, {43*1024}, s46
s_add_u32 s46, s46, s44
s_mov_b32 s14, {4096*1024}
s_mov_b32 s15, 0x20000
s_cmp_eq_u32 s38, 3
s_cselect_b32 s14, {1376*1024}, s14
s_waitcnt lgkmcnt(0)
s_cselect_b32 s12, s50, s48
s_cselect_b32 s13, s51, s49
""")
    srd(a, 28, 54, WS_BYTES)
    NI = 22
    cnt = [0]
    def dma_w(t, e):
        sg = 62 + cnt[0] % 2; cnt[0] += 1
        def s():
            a.I(f"s_add_u32 s{sg}, s43, {(2*t+e)*32768}")
            a.I(f"s_add_u32 m0, s45, {(t%NSLOT2)*16384 + e*8192}")
        def v():
            sy.dma(("w", t), [t % NSLOT2])
            a.vm(f"buffer_load_dwordx4 v{r.WD}, s[12:15], s{sg} offen lds", ("w", t))
        return s, v
    def bf(t, rt): return r.BF + ((t % NB2)*2 + rt)*4
    def load_b(t, rt):
        sg = 62 + cnt[0] % 2; cnt[0] += 1
        def s(): a.I(f"s_add_u32 s{sg}, s{44 if rt == 0 else 46}, {t*2048}")
        def v(): a.vm(f"buffer_load_dwordx4 {vr(bf(t, rt))}, v{r.ST}, s[28:31], s{sg} offen", ("b", t))
        return s, v
    def group(t): return [dma_w(t, 0), load_b(t, 0), dma_w(t, 1), load_b(t, 1)]
    stamp(a, 0)
    INIT = OPT['k2_init']
    for t in range(INIT):
        for s, v in group(t): s(); v()
    a.I(f"v_bfe_u32 v{T+5}, v{L}, 2, 2")
    a.I(f"v_lshl_add_u32 v{T+1}, v{T+2}, 2, v{T+5}")
    a.I(f"v_and_b32 v{T}, 7, v{T+1}")
    a.I("s_lshl_b32 s60, s41, 2"); a.I(f"v_xor_b32 v{T}, s60, v{T}")
    a.I(f"v_and_b32 v{T+6}, 3, v{L}"); a.I(f"v_lshlrev_b32 v{T+6}, 3, v{T+6}")
    a.I(f"v_lshl_add_u32 v{T}, v{T}, 5, v{T+6}")
    a.I(f"v_lshl_add_u32 v{T}, v{T+1}, 8, v{T}")
    a.I("s_lshl_b32 s60, s41, 13"); a.I(f"v_add_u32 v{r.TB}, s60, v{T}")
    for t in range(1, 8): a.I(f"v_xor_b32 v{r.TB+t}, {t*32}, v{r.TB}")
    for t in range(8): a.I(f"v_add_u32 v{r.TB+8+t}, 0x10000, v{r.TB+t}")
    a.raw(f"""
s_cmp_lg_u32 s38, 2
s_cselect_b32 s47, 1, 0
s_cmp_eq_u32 s41, 0
s_cselect_b32 s47, s47, 0
s_lshl_b32 s60, s37, 2
s_add_u32 s60, s60, s39
s_lshl_b32 s70, s60, 4
s_add_u32 s70, s70, s38
s_lshl_b32 s70, s70, 13
s_add_u32 s70, s70, s45
s_add_u32 s70, s70, {PART}
s_lshl_b32 s71, s60, 2
s_add_u32 s71, s71, s38
s_lshl_b32 s71, s71, 15
s_add_u32 s71, s71, s45
s_add_u32 s71, s71, {PART}
s_lshl_b32 s68, s37, 7
s_lshl_b32 s61, s42, 5
s_add_u32 s68, s68, s61
s_and_b32 s61, s38, 1
s_lshl_b32 s61, s61, 4
s_add_u32 s68, s68, s61
s_lshl_b32 s69, s39, 7
s_lshl_b32 s61, s41, 6
s_add_u32 s69, s69, s61
s_lshr_b32 s61, s38, 1
s_lshl_b32 s61, s61, 5
s_add_u32 s69, s69, s61
s_lshl_b32 s69, s69, 1
s_lshl_b32 s68, s68, 10
s_add_u32 s68, s68, s69
""")
    srd(a, 8, 56, 2048*1024); srd(a, 16, 64, 1024); srd(a, 20, 66, 2048*1024)
    a.I(f"v_lshlrev_b32 v{T}, 4, v{T+2}"); a.I(f"v_lshl_add_u32 v{r.XO}, v{T+4}, 10, v{T}")
    a.I(f"v_lshlrev_b32 v{T+7}, 3, v{T+2}")
    NP = 8
    def read1(n, rd):
        t, T_ = divmod(n, 8)
        b = r.POOL + (n % NP)*4; sl = t % NSLOT2
        def f():
            sy.read(("w", t), ("f", n, rd))
            a.lds(f"ds_read_b64_tr_b16 v[{b+2*rd}:{b+2*rd+1}], v{r.TB + 8*(sl//4) + T_} offset:{(sl%4)*16384 + rd*4096}", ("f", n, rd))
        return f
    for t in range(NI): sy.expect(("w", t), 16)
    a.wait(vm=[("w", x) for x in range(OPT["k2_bar"])]); sy.barrier()
    stamp(a, 1)
    for n in range(lead):
        for rd in range(2): read1(n, rd)()
    DEP = OPT["k2_dep"]
    nxt = INIT
    def mk(t0, t1):
        nonlocal nxt
        st = Stream(a); st.start()
        for t in range(t0, t1):
            base = len(st.m)
            for T_ in range(8):
                n = t*8 + T_; b = r.POOL + (n % NP)*4
                for rt in range(2):
                    d = r.ACC + (T_*2 + rt)*4
                    i = st.mfma(f"{MF} {vr(d)}, {vr(b)}, {vr(bf(t, rt))}, {'0' if t == 0 else vr(d)}",
                                lg=("f", n, 1) if rt == 0 else None, vm=("b", t) if (rt == 0 and T_ == 0) else None)
                    if n + lead < NI*8: st.put(i, read1(n + lead, rt), "ds")
            bpos = base + 2*(8 - lead)
            if t + 1 < NI and ((t + 1) % OPT["k2_bar"] == 0):
                upto = min(NI - 1, t + OPT["k2_bar"])
                def fb(upto=upto, t=t):
                    a.wait(vm=[("w", x) for x in range(t + 1, upto + 1)]); sy.barrier()
                st.put(bpos, fb, "bar")
            pcs = []
            while nxt < NI and nxt <= t + DEP and len(pcs) < 8 and (nxt - NSLOT2) <= t - 2*OPT["k2_bar"] + 0:
                pcs += group(nxt); nxt += 1
            step = 16 // max(1, len(pcs)) if pcs else 0
            for k, (s, v) in enumerate(pcs):
                g = base + min(15, 1 + k*step)
                st.put(g - 1, s, "salu"); st.put(g, v, "vm")
            if t == OPT['xb_at']:
                st.put(base + 3, lambda: a.vm(f"buffer_load_dwordx4 {vr(r.XB)}, v{r.XO}, s[8:11], s68 offen", "xb"), "vm")
                st.put(base + 7, lambda: a.vm(f"buffer_load_dwordx2 v[{r.XB+4}:{r.XB+5}], v{T+7}, s[16:19], s69 offen", "xb"), "vm")
                st.put(base + 11, lambda: a.vm(f"buffer_load_dwordx2 v[{r.XB+6}:{r.XB+7}], v{T+7}, s[16:19], s69 offen offset:32", "xb"), "vm")
        st.emit()
    for t0 in range(0, 20, 5):
        mk(t0, t0 + 5); stamp(a, 2 + t0//5)
    mk(20, 21)
    a.wait(vm=("b", NI-1)); a.wait_all(vm=False)
    a.I("s_cmp_eq_u32 s47, 0"); a.I("s_cbranch_scc1 L2_skip")
    mk(21, 22)
    a.raw("L2_skip:")
    a.wait_all()
    a.I("s_barrier")
    stamp(a, 6)
    a.I("s_lshl_b32 s60, s36, 13"); a.I(f"v_add_u32 v{T}, s60, v{r.ST}")
    a.I("s_xor_b32 s60, s60, 0x8000"); a.I(f"v_add_u32 v{T+1}, s60, v{r.ST}")
    for k in range(8):
        a.lds(f"ds_write_b128 v{T}, {vr(r.ACC + 32 + k*4)} offset:{k*1024}", "pw")
    a.wait(lg="pw"); a.I("s_barrier")
    order = [0, 2, 1, 3, 4, 6, 5, 7]
    for k in order:
        a.lds(f"ds_read_b128 {vr(r.POOL + k*4)}, v{T+1} offset:{k*1024}", ("pr", k))
    a.I("s_mov_b32 s60, 0xfffffffe")
    for jj in range(4):
        a.I(f"s_add_u32 s{74+jj}, s70, {jj*4*8192}"); a.I(f"s_add_u32 s{78+jj}, s71, {jj*8192}")
        a.I(f"s_cmp_eq_u32 s38, {jj}"); a.I(f"s_cselect_b32 s{74+jj}, 0x40000000, s{74+jj}"); a.I(f"s_cselect_b32 s{78+jj}, 0x40000000, s{78+jj}")
    for jj in range(4):
        o = r.BF + jj*4
        for hh in range(2):
            k = (2*(jj//2) + hh)*2 + jj % 2
            d = r.ACC + k*4
            a.wait(lg=("pr", k))
            for i in range(4): a.I(f"v_add_f32 v{d+i}, v{d+i}, v{r.POOL+k*4+i}")
            a.I(f"v_cvt_pk_bf16_f32 v{o+2*hh}, v{d}, v{d+1}"); a.I(f"v_cvt_pk_bf16_f32 v{o+2*hh+1}, v{d+2}, v{d+3}")
        for i in range(4): a.I(f"v_min_u32 v{o+i}, s60, v{o+i}")
        a.vm(f"buffer_store_dwordx4 {vr(o)}, v{r.ST}, s[28:31], s{74+jj} offen sc1")
    stamp(a, 7)
    X, B = r.XB, r.XB + 4
    for i in range(2): a.I(f"v_permlane16_swap_b32 v{X+i}, v{X+2+i}")
    for i in range(2): a.I(f"v_permlane32_swap_b32 v{X+i}, v{X+2+i}")
    PB = r.POOL
    a.I("s_mov_b32 s72, 0")
    a.wait_all()
    if OPT["k2_plain"]:
        for s in range(4):
            a.raw(f"buffer_load_dwordx4 {vr(PB+4*s)}, v{r.ST}, s[28:31], s{78+s} offen")
        a.I("s_branch L2_poll1")
    a.raw("L2_poll:")
    for s in range(4):
        a.raw(f"buffer_load_dwordx4 {vr(PB+4*s)}, v{r.ST}, s[28:31], s{78+s} offen sc1")
    a.raw("L2_poll1:")
    a.I("s_add_u32 s72, s72, 1")
    a.wait_all()
    a.I(f"v_max3_u32 v{T}, v{PB}, v{PB+1}, v{PB+2}")
    for i in range(3, 15, 2): a.I(f"v_max3_u32 v{T}, v{T}, v{PB+i}, v{PB+i+1}")
    a.I(f"v_max_u32 v{T}, v{T}, v{PB+15}")
    a.I(f"v_cmp_eq_u32 vcc, -1, v{T}")
    a.I("s_cmp_gt_u32 s72, 0x4000"); a.I("s_cbranch_scc1 L2_go")
    a.I("s_cbranch_vccz L2_go")
    if OPT["poll_sleep"]: a.I(f"s_sleep {OPT['poll_sleep']}")
    a.I("s_branch L2_poll")
    a.raw("L2_go:")
    for jj in range(4):
        a.I(f"s_cmp_lg_u32 s38, {jj}"); a.I(f"s_cbranch_scc1 L2_own{jj}")
        for i in range(4): a.C(f"v_mov_b32 v{PB+4*jj+i}, v{r.BF+4*jj+i}")
        a.raw(f"L2_own{jj}:")
    if OPT["stamp"]: a.I("v_writelane_b32 v255, s72, 15")
    stamp(a, 8)
    final_math(a, P=[PB, PB+4, PB+8], F=PB+12, X=X, B=B, T=r.ACC)
    a.vm(f"buffer_store_dwordx4 {vr(X)}, v{r.XO}, s[20:23], s68 offen")
    stamp(a, 9)
    if OPT["stamp"]: a.wait_all()
    stamp(a, 10); stamp_store(a, 2, 28)
    a.raw("L2_end:\ns_endpgm")
    return a.finalize(), a

def final_math(a, P, F, X, B, T):
    def unpack(d, s, hi): return f"v_and_b32 v{d}, 0xffff0000, v{s}" if hi else f"v_lshlrev_b32 v{d}, 16, v{s}"
    def rb(d): return [f"v_cvt_pk_bf16_f32 v{d}, v{d}, v{d}", f"v_lshlrev_b32 v{d}, 16, v{d}"]
    chains = []
    for e in range(8):
        i, hi = e // 2, e % 2
        s_, t1, g_, t2 = T + 4*e, T + 4*e + 1, T + 4*e + 2, T + 4*e + 3
        c = [unpack(g_, F+i, hi), unpack(t1, B+i, hi), f"v_add_f32 v{g_}, v{g_}, v{t1}"] + rb(g_)
        c += [f"v_mul_f32 v{t1}, {f32(-math.log2(math.e))}, v{g_}", f"v_exp_f32 v{t1}, v{t1}"]
        c += [unpack(s_, P[0]+i, hi), unpack(t2, P[1]+i, hi), f"v_add_f32 v{t1}, 1.0, v{t1}", f"v_rcp_f32 v{t1}, v{t1}",
              f"v_add_f32 v{s_}, v{s_}, v{t2}", unpack(t2, P[2]+i, hi), f"v_add_f32 v{s_}, v{s_}, v{t2}"] + rb(s_)
        c += [f"v_mul_f32 v{g_}, v{g_}, v{t1}"] + rb(g_)
        c += [f"v_mul_f32 v{s_}, v{s_}, v{g_}"] + rb(s_)
        c += [unpack(t2, X+i, hi), f"v_add_f32 v{s_}, v{s_}, v{t2}"]
        chains.append(c)
    for k in range(len(chains[0])):
        for c in chains: a.I(c[k])
    for i in range(4): a.I(f"v_cvt_pk_bf16_f32 v{X+i}, v{T+8*i}, v{T+8*i+4}")
    for i in range(2): a.I(f"v_permlane32_swap_b32 v{X+i}, v{X+2+i}")
    for i in range(2): a.I(f"v_permlane16_swap_b32 v{X+i}, v{X+2+i}")

KRING, VRING = 0, 65536
WQRING, NWQ = 24576, 5
W1RING, NW1 = 73728, 3
XRING = 98304
class R1:
    L = 1; X0 = 2; WQ = 6; W1 = 7; KD = 8; VD = 9; XR = 10; TB = 12; W1B = 20; KB = 23; ST = 27
    T = 28
    POOL = 36
    ACC = 68
    FACC = 132
    XF = 156
    B1 = 188
    QF = 196
    S = 132; P = 164; LACC = 180; ONE = 188
    PF = 252
    SENT = 228

def k1_setup(a, r):
    L, T = r.L, r.T
    a.raw("""
s_cmp_ge_u32 s2, 256
s_cbranch_scc1 L1_end
s_load_dwordx2 s[54:55], s[0:1], 96
s_load_dwordx2 s[52:53], s[0:1], 24
s_load_dwordx4 s[56:59], s[0:1], 48
s_load_dwordx4 s[48:51], s[0:1], 8
s_load_dwordx2 s[4:5], s[0:1], 32
s_load_dwordx2 s[6:7], s[0:1], 64
v_lshrrev_b32 v2, 6, v0
v_and_b32 v1, 63, v0
v_readfirstlane_b32 s36, v2
s_and_b32 s37, s2, 7
s_lshl_b32 s37, s37, 2
s_lshr_b32 s38, s2, 3
s_and_b32 s39, s38, 3
s_add_u32 s37, s37, s39
s_lshr_b32 s38, s38, 2
s_mul_i32 s39, s39, ROTMUL
s_add_u32 s39, s39, s38
s_and_b32 s39, s39, ROTMASK
s_mul_i32 s47, s37, 3
s_lshl_b32 s60, s37, 1
s_add_u32 s60, s60, 22
s_cmp_lt_u32 s37, 22
s_cselect_b32 s47, s47, s60
""".replace("ROTMASK", str(OPT["rot"])).replace("ROTMUL", str(OPT["rotm"])))
    a.I("s_lshl_b32 s60, s38, 8"); a.I("s_lshl_b32 s61, s36, 5"); a.I("s_add_u32 s60, s60, s61")
    a.I(f"v_lshrrev_b32 v{T}, 3, v{L}"); a.I(f"v_add_u32 v{T}, s60, v{T}")
    a.I(f"v_lshlrev_b32 v{T}, 10, v{T}")
    a.I(f"v_and_b32 v{T+1}, 7, v{L}"); a.I(f"v_lshrrev_b32 v{T+2}, 4, v{L}")
    a.I(f"v_xor_b32 v{T+1}, v{T+1}, v{T+2}")
    a.I(f"v_lshl_add_u32 v{r.X0}, v{T+1}, 4, v{T}")
    a.I(f"v_xor_b32 v{r.X0+1}, 64, v{r.X0}"); a.I(f"v_add_u32 v{r.X0+1}, 8192, v{r.X0+1}")
    a.I(f"v_add_u32 v{r.X0+2}, 16384, v{r.X0}"); a.I(f"v_add_u32 v{r.X0+3}, 16384, v{r.X0+1}")
    a.I("s_lshl_b32 s61, s36, 2")
    a.I(f"v_add_u32 v{T+3}, s61, v{T+2}")
    a.I(f"v_and_b32 v{T+4}, 15, v{L}")
    a.I(f"v_lshrrev_b32 v{T+5}, 1, v{T+3}"); a.I(f"v_and_b32 v{T+5}, 4, v{T+5}")
    a.I(f"v_or_b32 v{T+5}, v{T+5}, v{T+2}")
    a.I(f"v_lshlrev_b32 v{T+5}, 1, v{T+5}"); a.I(f"v_xor_b32 v{T+5}, v{T+5}, v{T+4}")
    a.I(f"v_lshlrev_b32 v{T+5}, 4, v{T+5}")
    a.I(f"v_lshl_add_u32 v{r.WQ}, v{T+3}, 13, v{T+5}")
    a.I("s_lshl_b32 s61, s37, 8"); a.I(f"v_add_u32 v{r.WQ}, s61, v{r.WQ}")
    a.I("s_lshl_b32 s61, s36, 3")
    a.I(f"v_lshrrev_b32 v{T+5}, 3, v{L}"); a.I(f"v_add_u32 v{T+5}, s61, v{T+5}")
    a.I(f"v_and_b32 v{T+6}, 2, v{T+5}")
    a.I(f"v_lshrrev_b32 v{T+7}, 1, v{T+5}"); a.I(f"v_and_b32 v{T+7}, 4, v{T+7}")
    a.I(f"v_or_b32 v{T+6}, v{T+6}, v{T+7}")
    a.I(f"v_and_b32 v{T+7}, 7, v{L}"); a.I(f"v_xor_b32 v{T+6}, v{T+6}, v{T+7}")
    a.I(f"v_lshlrev_b32 v{T+6}, 4, v{T+6}")
    a.I(f"v_mul_u32_u24 v{T+5}, 2752, v{T+5}"); a.I(f"v_add_u32 v{r.W1}, v{T+5}, v{T+6}")
    a.I("s_lshl_b32 s61, s47, 5"); a.I(f"v_add_u32 v{r.W1}, s61, v{r.W1}")
    a.I("s_lshl_b32 s45, s36, 10")
    a.I("s_lshl_b32 s44, s36, 13"); a.I(f"s_add_u32 s44, s44, {XRING}")
    a.I("s_lshl_b32 s46, s37, 19"); a.I(f"s_add_u32 s46, s46, {1536*256}")

def k1_setup2(a, r):
    L, T = r.L, r.T
    a.I(f"v_and_b32 v{T+5}, 15, v{T+3}"); a.I(f"v_xor_b32 v{T+5}, v{T+5}, v{T+4}")
    a.I(f"v_lshlrev_b32 v{T+5}, 4, v{T+5}"); a.I(f"v_lshl_add_u32 v{r.KD}, v{T+3}, 8, v{T+5}")
    a.I(f"v_and_b32 v{T+5}, 7, v{T+3}"); a.I(f"v_lshlrev_b32 v{T+5}, 1, v{T+5}"); a.I(f"v_xor_b32 v{T+5}, v{T+5}, v{T+4}")
    a.I(f"v_lshlrev_b32 v{T+5}, 4, v{T+5}"); a.I(f"v_lshl_add_u32 v{r.VD}, v{T+3}, 8, v{T+5}")
    a.I(f"v_lshrrev_b32 v{T+5}, 1, v{T+4}"); a.I(f"v_xor_b32 v{T+5}, v{T+5}, v{T+2}")
    a.I(f"v_lshlrev_b32 v{T+5}, 4, v{T+5}"); a.I(f"v_lshl_add_u32 v{T+5}, v{T+4}, 7, v{T+5}")
    a.I(f"v_add_u32 v{r.XR}, s44, v{T+5}"); a.I(f"v_xor_b32 v{r.XR+1}, 64, v{r.XR}")
    a.I(f"v_bfe_u32 v{T+5}, v{L}, 2, 2")
    a.I(f"v_and_b32 v{T+6}, 3, v{L}"); a.I(f"v_lshlrev_b32 v{T+6}, 3, v{T+6}")
    a.I(f"v_and_b32 v{T+7}, 1, v{T+2}")
    a.I(f"v_lshl_add_u32 v{T}, v{T+7}, 2, v{T+5}")
    a.I(f"v_lshl_add_u32 v{T}, v{T}, 5, v{T+6}")
    a.I(f"v_lshl_add_u32 v{T+1}, v{T+2}, 3, v{T+5}")
    a.I(f"v_lshl_add_u32 v{r.TB}, v{T+1}, 8, v{T}")
    for t in range(1, 8): a.I(f"v_xor_b32 v{r.TB+t}, {t*32}, v{r.TB}")
    a.I(f"v_lshrrev_b32 v{T}, 1, v{T+5}"); a.I(f"v_lshl_add_u32 v{T}, v{T+7}, 1, v{T}")
    a.I(f"v_lshl_add_u32 v{T}, v{T}, 5, v{T+6}")
    a.I(f"v_lshl_add_u32 v{T}, v{T+1}, 7, v{T}")
    a.I(f"v_add_u32 v{r.W1B}, {W1RING}, v{T}")
    for t in range(1, 3): a.I(f"v_xor_b32 v{r.W1B+t}, {t*32}, v{r.W1B}")
    a.I(f"v_xor_b32 v{T}, v{T+4}, v{T+2}"); a.I(f"v_lshlrev_b32 v{T}, 4, v{T}")
    a.I(f"v_lshl_add_u32 v{r.KB}, v{T+4}, 8, v{T}")
    for ks in range(1, 4): a.I(f"v_xor_b32 v{r.KB+ks}, {ks*64}, v{r.KB}")
    a.I(f"v_lshlrev_b32 v{r.ST}, 4, v{L}")
    a.I(f"v_lshlrev_b32 v{T+3}, 10, v{T+2}"); a.I(f"v_sub_u32 v{T+3}, {VRING}, v{T+3}")

def k1(lead=5, leadb=6):
    a = Asm(); r = R1; L, T = r.L, r.T; sy = Sync(a)
    k1_setup(a, r)
    PS = 64
    def piece_sgprs(p):
        dst = PS + 4*p
        a.I(f"s_add_u32 s{dst}, s39, {p}"); a.I(f"s_and_b32 s{dst}, s{dst}, 7")
        a.I(f"s_mul_i32 s{dst+3}, s{dst}, {64*2752}")
        a.I(f"s_lshl_b32 s{dst+1}, s{dst}, 19"); a.I(f"s_add_u32 s{dst+2}, s{dst+1}, {32*8192}")
        a.I(f"s_lshl_b32 s{dst}, s{dst}, 7")
    piece_sgprs(0); piece_sgprs(1)
    a.I("s_waitcnt lgkmcnt(0)")
    srd(a, 8, 54, 2048*1024); srd(a, 12, 52, 512*8192); srd(a, 16, 56, 512*2752)
    ntw = "nt " if OPT["nt_w"] else ""; ntk = "nt " if OPT["nt_kv"] else ""
    def slots(base, n): return [("u", base//8192 + k) for k in range(n//8192)] if n >= 8192 else [("h", base//4096)]
    def dma_x(p, j):
        def s(): a.I(f"s_add_u32 m0, s44, {(p%2)*4096 + j*1024}")
        def v():
            sy.dma(("x", p), [("xs", p % 2)])
            a.vm(f"buffer_load_dwordx4 v{r.X0+j}, s[8:11], s{PS+4*p} offen lds", ("x", p))
        return s, v
    def dma_wq(s_):
        def s(): a.I(f"s_add_u32 m0, s45, {WQRING + (s_%NWQ)*8192}")
        def v():
            sy.dma(("wq", s_), [(WQRING + (s_%NWQ)*8192)//8192])
            a.vm(f"buffer_load_dwordx4 v{r.WQ}, s[12:15], s{PS+4*(s_//2)+1+(s_%2)} offen {ntw}lds", ("wq", s_))
        return s, v
    def dma_w1(p):
        def s(): a.I(f"s_add_u32 m0, s45, {W1RING + (p%NW1)*8192}")
        def v():
            sy.dma(("w1", p), [(W1RING + (p%NW1)*8192)//8192])
            a.vm(f"buffer_load_dwordx4 v{r.W1}, s[16:19], s{PS+4*p+3} offen {ntw}lds", ("w1", p))
        return s, v
    def dma_kv(which, i):
        base = (KRING if which == "k" else VRING) + (i % 8)*8192
        def s():
            a.I(f"s_add_u32 s62, s46, {i*8192}"); a.I(f"s_add_u32 m0, s45, {base}")
        def v():
            if base >= XRING: assert ("x", 6) in sy.free and ("x", 7) in sy.free and "pa_done" in sy.free
            sy.dma((which, i), [base//8192])
            a.vm(f"buffer_load_dwordx4 v{r.KD if which=='k' else r.VD}, {'s[20:23]' if which=='k' else 's[24:27]'}, s62 offen {ntk}lds", (which, i))
        return s, v
    def now(p): p[0](); p[1]()
    stamp(a, 0)
    for j in range(4): now(dma_x(0, j))
    now(dma_wq(0)); now(dma_w1(0)); now(dma_wq(1))
    for p in range(2, 8): piece_sgprs(p)
    srd(a, 20, 48, 32*2048*256); srd(a, 24, 50, 32*2048*256); srd(a, 32, 58, 2752); srd(a, 28, 54, WS_BYTES)
    if OPT["pf_code"]:
        a.I("s_getpc_b64 s[40:41]"); a.raw("L1_pc:")
        a.I(f"v_lshlrev_b32 v{r.PF+1}, 7, v0")
        a.I(f"v_min_u32 v{r.PF+1}, L_code_end-L1_pc-4, v{r.PF+1}")
        a.vm(f"global_load_dword v{r.PF}, v{r.PF+1}, s[40:41]", "pf")
    a.I(f"v_lshlrev_b32 v{T}, 3, v{T+2}"); a.I("s_lshl_b32 s61, s47, 5")
    for t in range(3):
        a.vm(f"buffer_load_dwordx2 v[{r.B1+2*t}:{r.B1+2*t+1}], v{T}, s[32:35], s61 offen offset:{32*t}", "b1")
    k1_setup2(a, r)
    for i in range(4): a.I(f"v_mov_b32 v{r.SENT+i}, -1")
    a.I("s_lshl_b32 s42, s2, 15"); a.I("s_lshl_b32 s43, s36, 12"); a.I("s_add_u32 s42, s42, s43"); a.I(f"s_add_u32 s42, s42, {PART}")

    NP, NF = 8, 11
    for s_ in range(16): sy.expect(("wq", s_), 16)
    for p in range(8): sy.expect(("w1", p), 12); sy.expect(("x", p), 4)
    def pa_read(n, rd):
        s_, t = divmod(n, NF)
        b = r.POOL + (n % NP)*4
        def f():
            if t < 8:
                sy.read(("wq", s_), ("f", n, rd))
                a.lds(f"ds_read_b64_tr_b16 v[{b+2*rd}:{b+2*rd+1}], v{r.TB+t} offset:{WQRING + (s_%NWQ)*8192 + rd*1024}", ("f", n, rd))
            else:
                sy.read(("w1", s_//2), ("f", n, rd))
                a.lds(f"ds_read_b64_tr_b16 v[{b+2*rd}:{b+2*rd+1}], v{r.W1B+t-8} offset:{((s_//2)%NW1)*8192 + (s_%2)*4096 + rd*512}", ("f", n, rd))
        return f
    def xf(s_, rt): return r.XF + ((s_ % 4)*2 + rt)*4
    def x_read(p, e, rt):
        def f():
            a.wait(vm=("x", p))
            sy.read(("x", p), ("xf", 2*p+e, rt), private=True)
            b = xf(2*p+e, rt)
            a.lds(f"ds_read_b128 v[{b}:{b+3}], v{r.XR+e} offset:{(p%2)*4096 + rt*2048}", ("xf", 2*p+e, rt))
        return f
    for e in range(2):
        for rt in range(2): x_read(0, e, rt)()
    a.wait(vm=[("wq", 0), ("w1", 0)]); sy.barrier()
    stamp(a, 1)
    for n in range(lead):
        for rd in range(2): pa_read(n, rd)()
    def pf_kv():
        a.I(f"v_and_b32 v{r.PF+1}, 127, v0"); a.I(f"v_lshlrev_b32 v{r.PF+1}, 7, v{r.PF+1}")
        a.I("s_lshl_b32 s60, s38, 14"); a.I("s_add_u32 s60, s60, s46")
        a.I("s_cmp_lt_u32 s36, 2"); a.I("s_cselect_b32 s96, s20, s24"); a.I("s_cselect_b32 s97, s21, s25")
        a.I("s_cmp_lt_u32 s36, 4"); a.I("s_cselect_b32 s98, s22, 0"); a.I("s_mov_b32 s99, 0x20000")
        a.vm(f"buffer_load_dword v{r.PF}, v{r.PF+1}, s[96:99], s60 offen {'nt' if OPT['pf_kv_nt'] else ''}", "pf")
    plan = {s_: [] for s_ in range(16)}
    plan[0] += [dma_x(1, j) for j in range(4)] + [dma_wq(2), dma_w1(1), dma_wq(3)]
    plan[1] += [dma_wq(4), dma_w1(2)]
    late = {s_: [] for s_ in range(16)}
    for s_ in range(16):
        p = s_ // 2
        if s_ % 2 == 0 and p + 2 < 8:
            tgt = s_ if s_ > 0 else 1
            plan[tgt] += [("xfree", p)] + [dma_x(p+2, j) for j in range(4)]
        if s_ >= 1 and s_ + 4 < 16: late[s_].append(dma_wq(s_+4))
        if s_ % 2 == 0 and p >= 1 and p + 2 < 8: late[s_].append(dma_w1(p+2))
    plan[11] += [dma_kv("k", 0)]; plan[13] += [dma_kv("k", 1), dma_kv("v", 0)]; plan[15] += [dma_kv("k", 2)]
    st = Stream(a); st.start()
    for s_ in range(16):
        p = s_ // 2
        base = len(st.m)
        for t in range(NF):
            n = s_*NF + t; b = r.POOL + (n % NP)*4
            for rt in range(2):
                d = (r.ACC + (t*2 + rt)*4) if t < 8 else (r.FACC + ((t-8)*2 + rt)*4)
                lg = [("f", n, 1)] + ([("xf", s_, 0), ("xf", s_, 1)] if t == 0 else []) if rt == 0 else None
                i = st.mfma(f"{MF} {vr(d)}, {vr(b)}, {vr(xf(s_, rt))}, {'0' if s_ == 0 else vr(d)}", lg=lg)
                if n + lead < 16*NF: st.put(i, pa_read(n + lead, rt), "ds")
        bpos = base + 2*(NF - lead)
        if s_ < 15:
            def fb(s_=s_):
                a.wait(vm=[("wq", s_+1), ("w1", (s_+1)//2)]); sy.barrier()
            st.put(bpos, fb, "bar")
        g = base + 1
        for pc in plan[s_]:
            if pc[0] == "xfree":
                st.put(g - 1, (lambda p=pc[1]: sy.private_free(("x", p))), "salu"); continue
            st.put(g - 1, pc[0], "salu"); st.put(g, pc[1], "vm"); g += 2 if len(plan[s_]) > 5 else 3
        g = max(g, bpos + 2)
        for pc in late[s_]:
            st.put(g - 1, pc[0], "salu"); st.put(g, pc[1], "vm"); g += 3
        assert g <= base + 24, (s_, g - base)
        if s_ % 2 == 1 and p + 1 < 8:
            for k, (e, rt) in enumerate([(0, 0), (0, 1), (1, 0), (1, 1)]):
                st.put(base + 2 + 3*k, x_read(p+1, e, rt), "x")
        if s_ == OPT["pf_kv"]: st.put(base + 20, pf_kv, "x")
        if s_ in (4, 8, 12) and OPT["stamp"]: st.put(base, (lambda s_=s_: stamp(a, 1 + s_//4)), "x")
    st.emit()
    stamp(a, 5)
    a.I(f"s_mov_b32 s60, {f32(CSCALE)}")
    for rt in range(2):
        for ks in range(4):
            q = r.QF + (rt*4 + ks)*4
            for hh in range(2):
                d = r.ACC + ((2*ks+hh)*2 + rt)*4
                for i in range(4): a.I(f"v_mul_f32 v{d+i}, s60, v{d+i}")
                a.I(f"v_cvt_pk_bf16_f32 v{q+2*hh}, v{d}, v{d+1}")
                a.I(f"v_cvt_pk_bf16_f32 v{q+2*hh+1}, v{d+2}, v{d+3}")
    for sw in ("v_permlane32_swap_b32", "v_permlane16_swap_b32"):
        for rt in range(2):
            for ks in range(4):
                q = r.QF + (rt*4 + ks)*4
                for i in range(2): a.I(f"{sw} v{q+i}, v{q+2+i}")
    a.wait(vm=[("k", 0), ("k", 1), "b1"])
    sy.private_free(("x", 6)); sy.private_free(("x", 7))
    sy.barrier(); sy.free.add("pa_done")
    for x in [("k", 3), ("v", 1), ("k", 4), ("v", 2)]: now(dma_kv(*x))
    for t in range(8): a.I(f"v_add_u32 v{r.TB+t}, v{T+3}, v{r.TB+t}")
    a.I("s_lshl_b32 s60, s38, 4"); a.I("s_lshl_b32 s61, s36, 1"); a.I("s_add_u32 s60, s60, s61")
    a.I(f"s_mul_i32 s61, s60, {43*1024}"); a.I(f"s_add_u32 s61, s61, {HFR}")
    a.I(f"s_lshl_b32 s63, s60, 17"); a.I("s_lshl_b32 s96, s37, 12"); a.I("s_add_u32 s63, s63, s96"); a.I(f"s_add_u32 s63, s63, {OFR}")
    for t in range(3):
        a.I(f"s_add_u32 s96, s47, {t}"); a.I("s_lshr_b32 s97, s96, 1"); a.I("s_lshl_b32 s97, s97, 10")
        a.I("s_and_b32 s96, s96, 1"); a.I("s_lshl_b32 s96, s96, 3"); a.I("s_add_u32 s96, s96, s97"); a.I("s_add_u32 s96, s96, s61")
        a.I(f"s_add_u32 s97, s96, {43*1024}")
        if t == 2:
            a.I("s_cmp_ge_u32 s37, 22"); a.I("s_cselect_b32 s96, 0x40000000, s96"); a.I("s_cselect_b32 s97, 0x40000000, s97")
        bb = r.B1 + 2*t
        a.I(f"v_lshlrev_b32 v{T}, 16, v{bb}"); a.I(f"v_and_b32 v{T+1}, 0xffff0000, v{bb}")
        a.I(f"v_lshlrev_b32 v{T+4}, 16, v{bb+1}"); a.I(f"v_and_b32 v{T+5}, 0xffff0000, v{bb+1}")
        bias = [T, T+1, T+4, T+5]
        for rt in range(2):
            d = r.FACC + (t*2 + rt)*4
            for i in range(4): a.I(f"v_add_f32 v{d+i}, v{d+i}, v{bias[i]}")
            for i in range(4): a.I(f"v_max_f32 v{d+i}, 0, v{d+i}")
            for i in range(4): a.I(f"v_mul_f32 v{d+i}, v{d+i}, v{d+i}")
            a.I(f"v_cvt_pk_bf16_f32 v{d}, v{d}, v{d+1}"); a.I(f"v_cvt_pk_bf16_f32 v{d+1}, v{d+2}, v{d+3}")
            a.vm(f"buffer_store_dwordx2 v[{d}:{d+1}], v{r.ST}, s[28:31], s{96+rt} offen", "hst")
    for i in range(4): a.I(f"v_mov_b32 v{r.ONE+i}, 0x3f803f80")
    stamp(a, 6)
    phase_b(a, r, sy, dma_kv, leadb)
    a.raw("L1_end:\ns_endpgm")
    return a.finalize(), a

def phase_b(a, r, sy, dma_kv, leadb):
    T = r.T; NP = 8
    seq = [("k", 0, j) for j in range(8)]
    for i in range(17):
        if i + 1 < 16: seq += [("k", i+1, j) for j in range(8)]
        if i >= 1: seq += [("v", i-1, j) for j in range(8)]
    for i in range(16): sy.expect(("k", i), 8); sy.expect(("v", i), 16)
    def reads(n):
        kind, i, j = seq[n]; b = r.POOL + (n % NP)*4
        if kind == "k":
            def f():
                sy.read(("k", i), ("g", n, 1))
                a.lds(f"ds_read_b128 {vr(b)}, v{r.KB + j%4} offset:{KRING + (i%8)*8192 + (j//4)*4096}", ("g", n, 1))
            return [f]
        def g(rd):
            def f():
                sy.read(("v", i), ("g", n, rd))
                a.lds(f"ds_read_b64_tr_b16 v[{b+2*rd}:{b+2*rd+1}], v{r.TB+j} offset:{(i%8)*8192 + rd*4096}", ("g", n, rd))
            return f
        return [g(0), g(1)]
    def Sreg(i, rt, kt): return r.S + (i % 2)*16 + (rt*2 + kt)*4
    def Preg(i, rt): return r.P + (i % 2)*8 + rt*4
    def softmax_ops(i):
        ops = []; sb = r.S + (i % 2)*16; pb = r.P + (i % 2)*8
        for k in range(16):
            ops.append(f"v_exp_f32 v{sb+k}, v{sb+k}")
            if k >= 2 and k % 2 == 0: ops.append(f"v_cvt_pk_bf16_f32 v{pb+(k-2)//2}, v{sb+k-2}, v{sb+k-1}")
        ops.append(f"v_cvt_pk_bf16_f32 v{pb+7}, v{sb+14}, v{sb+15}")
        return ops
    for n in range(leadb):
        for f in reads(n): f()
    steps = [(-1, 8)]
    for i in range(17): steps.append((i, (8 if i + 1 < 16 else 0) + (8 if i >= 1 else 0)))
    st = Stream(a); st.start()
    guarded = {("k", 0), ("k", 1)}
    PBAR = OPT["pb_bar"]
    n = 0
    def pf_w_setup():
        a.I("s_and_b32 s60, s2, 7"); a.I("s_lshr_b32 s60, s60, 1"); a.I("s_cmp_eq_u32 s60, 3")
        a.I("s_cselect_b32 s8, s6, s4"); a.I("s_cselect_b32 s9, s7, s5")
        a.I(f"s_mov_b32 s10, {4096*1024}"); a.I(f"s_cselect_b32 s10, {1376*1024}, s10"); a.I("s_mov_b32 s11, 0x20000")
        a.I(f"s_mul_i32 s60, s60, {43*32768}"); a.I("s_cselect_b32 s60, 0, s60")
        a.I("s_lshr_b32 s61, s2, 3"); a.I(f"s_mul_i32 s61, s61, {43*1024}"); a.I("s_add_u32 s43, s60, s61")
        a.I(f"v_lshlrev_b32 v{r.PF+1}, 7, v{r.L}"); a.I(f"v_add_u32 v{r.PF+1}, s45, v{r.PF+1}")
        a.I(f"v_cmp_gt_u32 vcc, 8, v{r.L}"); a.I(f"v_cndmask_b32 v{r.PF+1}, -1, v{r.PF+1}, vcc")
    def pf_w():
        a.vm(f"buffer_load_dword v{r.PF}, v{r.PF+1}, s[8:11], s43 offen", "pf")
        a.I("s_add_u32 s43, s43, 8192")
    pf_w_setup()
    for (i, cnt) in steps:
        base = len(st.m)
        for fi in range(cnt):
            kind, ii, j = seq[n]; b = r.POOL + (n % NP)*4
            nn = n + leadb
            rds = reads(nn) if nn < len(seq) else []
            for rt in range(2):
                if kind == "k":
                    kt, ks = j // 4, j % 4; d = Sreg(ii, rt, kt)
                    m = st.mfma(f"{MF} {vr(d)}, {vr(b)}, {vr(r.QF + (rt*4+ks)*4)}, {'0' if ks == 0 else vr(d)}", lg=("g", n, 1) if rt == 0 else None)
                else:
                    d = r.ACC + (j*2 + rt)*4
                    m = st.mfma(f"{MF} {vr(d)}, {vr(b)}, {vr(Preg(ii, rt))}, {'0' if ii == 0 else vr(d)}", lg=("g", n, 1) if rt == 0 else None)
                k0 = 2 - len(rds)
                if rt >= k0:
                    if rt == k0 and seq[nn][:2] not in guarded:
                        k2_, i2, _ = seq[nn]
                        tags = []
                        if k2_ == "k":
                            for u in range(PBAR):
                                if i2 + u < 16: tags.append(("k", i2 + u))
                                if 0 <= i2 + u - 2 < 16: tags.append(("v", i2 + u - 2))
                        else:
                            tags = [("v", x) for x in range(i2, 16)]
                        def fb(tags=tags):
                            a.wait(vm=tags); sy.barrier()
                        st.put(m, fb, "bar")
                        guarded |= set(tags)
                    st.put(m, rds[rt - k0], "ds")
            if kind == "v" and j == 3:
                for rt in range(2):
                    l = r.LACC + rt*4
                    st.mfma(f"{MF} {vr(l)}, {vr(r.ONE)}, {vr(Preg(ii, rt))}, {'0' if ii == 0 else vr(l)}")
            n += 1
        end = len(st.m)
        if 0 <= i < 16: st.spread_valu(softmax_ops(i), base, end)
        dm = []
        if 0 <= i:
            if i + 5 < 16: dm.append(dma_kv("k", i+5))
            if i + 3 < 16: dm.append(dma_kv("v", i+3))
        free = [g for g in range(base + 1, end) if not st.has(g, "ds") and not st.has(g, "bar")]
        for k, pc in enumerate(dm):
            g = free[min(len(free) - 1, 1 + 2*k)] if len(free) > 2 else base + 3 + 4*k
            st.put(g - 1, pc[0], "salu"); st.put(g, pc[1], "vm")
        if OPT["pf_w"] >= 0 and i >= OPT["pf_w"] and (i - OPT["pf_w"]) % OPT["pf_ws"] == 0 and (i - OPT["pf_w"]) // OPT["pf_ws"] < 6: st.put(base + 9, pf_w, "x")
        if i == OPT["fill_at"]:
            for k in range(4):
                st.put(base + 2 + 3*k, (lambda k=k: a.vm(f"buffer_store_dwordx4 {vr(r.SENT)}, v{r.ST}, s[28:31], s42 offen offset:{k*1024}", "fill")), "x")
        if i in (4, 8, 12) and OPT["stamp"]: st.put(base, (lambda i=i: stamp(a, 6 + i//4)), "x")
    st.emit()
    stamp(a, 10)
    for rt in range(2): a.I(f"v_rcp_f32 v{T+rt}, v{r.LACC+rt*4}")
    for rt in range(2):
        for ks in range(4):
            o = r.QF + (rt*4 + ks)*4
            for hh in range(2):
                d = r.ACC + ((2*ks+hh)*2 + rt)*4
                for i in range(4): a.I(f"v_mul_f32 v{d+i}, v{T+rt}, v{d+i}")
                a.I(f"v_cvt_pk_bf16_f32 v{o+2*hh}, v{d}, v{d+1}")
                a.I(f"v_cvt_pk_bf16_f32 v{o+2*hh+1}, v{d+2}, v{d+3}")
            if ks == 0 and rt == 1: a.I(f"s_add_u32 s63, s63, {128*1024}")
            a.vm(f"buffer_store_dwordx4 {vr(o)}, v{r.ST}, s[28:31], s63 offen offset:{ks*1024}")
    stamp(a, 11)
    if OPT["stamp"]: a.wait_all()
    stamp(a, 12); stamp_store(a, 1, 28)

def build():
    kern.STAMP = bool(OPT["stamp"])
    o = """; generated by gen/kern2.py
; @launch kernel=ln_kernel grid=(256,1,1) block=(512,1,1) lds=0
; @launch kernel=attn_kernel grid=(256,1,1) block=(512,1,1) lds=163840
; @launch kernel=gemm_kernel grid=(256,1,1) block=(512,1,1) lds=131072
.amdgcn_target "amdgcn-amd-amdhsa--gfx950"
.text
"""
    o += khead("ln_kernel") + kern.k0()
    t, a1 = k1(); o += khead("attn_kernel") + t
    t, a2 = k2(); o += khead("gemm_kernel") + t + "L_code_end:\n"
    o += '.section .rodata,"a"\n' + kd("ln_kernel", 32) + kd("attn_kernel") + kd("gemm_kernel")
    print("nops added:", a1.nops_added, a2.nops_added, file=sys.stderr)
    return o
if __name__ == "__main__":
    for x in sys.argv[2:]:
        k, v = x.split("="); assert k in OPT, k; OPT[k] = int(v)
    open(sys.argv[1], "w").write(build())
```

```python
import sys, math, struct
from asmlib import *
import kern, kern2
from kern import f32, srd, MF, CSCALE, OFR, HFR, PART, WS_BYTES
from kern2 import OPT, stamp, stamp_store, Sync, k1_setup, k1_setup2, KRING, VRING, WQRING, NWQ, W1RING, NW1, XRING
from kern3 import dpp, xsum, allsum, rb, stats_ops

OPT.update(dict(nt_kv=0, rot=7, rotm=0, pf_kv=-1, nonce_at=0, pub_at=2, cons_at=7, chk_at=9, pb_bar=2, pb_k=6, pb_v=4, dsfirst=0, force_slow=0, warm=0, st_late=0, ord=1, nt_w=1, burst=0, pf_code=0, stu=1, cons_plain=1, cons_sp=4, h_at=5, h2_at=12, xb_at=18, pf_b2=13))
STATS = 44 << 20
CSW = 45 << 20
TABLE = XRING + 6*8192

SLOW8 = ("v_exp", "v_rcp", "v_sqrt", "v_permlane", "v_log", "v_rsq")
def is8(t): return t.startswith(SLOW8)

class Stream:
    def __init__(self, a):
        self.a = a; self.m = []; self.gap = []; self.pre = []
    def mfma(self, text, lg=None, vm=None):
        self.m.append((text, lg, vm)); self.gap.append([]); return len(self.m) - 1
    def put(self, i, fn, kind="x"):
        if isinstance(fn, str):
            t = fn; fn = (lambda: self.a.I(t))
            if kind == "valu" and OPT["dsfirst"] and not is8(t): kind = "valu2"
        (self.pre if i < 0 else self.gap[i]).append((kind, fn))
    def has(self, i, kind): return any(k == kind for k, _ in self.gap[i])
    def emit(self):
        order = {"bar": 0, "valu": 1, "salu": 2, "ds": 3, "valu2": 3.5, "vm": 4, "x": 5}
        for k, f in self.pre: f()
        for i, (t, lg, vm) in enumerate(self.m):
            self.a.wait(vm=vm, lg=lg)
            self.a.I(t)
            for k, f in sorted(self.gap[i], key=lambda x: order[x[0]]): f()
    def dense(self, ops, lo, hi=None):
        g = lo; k = 0
        while k < len(ops):
            assert g < len(self.m), "ran past stream"
            if is8(ops[k]): self.put(g, ops[k], "valu"); k += 1
            else:
                self.put(g, ops[k], "valu"); k += 1
                if k < len(ops) and not is8(ops[k]): self.put(g, ops[k], "valu"); k += 1
            g += 1
        if hi is not None: assert g <= hi, (g, hi)
        return g

class R1:
    L = 1; X0 = 2; WQ = 6; W1 = 7; KD = 8; VD = 9; XR = 10; TB = 12; W1B = 20; KB = 23; ST = 27
    T = 28
    POOL = 36
    ACC = 68
    FACC = 132
    XF = 156
    ONE = 220
    CSQ = 224; CSF = 228
    BA = 220
    SC = 228
    AD = 232
    U = 236
    PF = 252
    HR = 236
    QF = 156; S = 188; P = 132; LS = 148; SENT = 152

def k1(lead=5, leadb=6):
    a = Asm(); r = R1; L, T, U = r.L, r.T, r.U; sy = Sync(a)
    k1_setup(a, r)
    a.ins.insert(2, Ins("s_load_dwordx2 s[40:41], s[0:1], 0"))
    a.ins.insert(3, Ins("s_load_dwordx2 s[42:43], s[0:1], 88"))
    a.ins.insert(4, Ins("s_memrealtime s[96:97]"))
    if OPT["pf_code"]:
        pre = Asm()
        pre.I("s_getpc_b64 s[98:99]"); pre.raw("L1_pc:")
        pre.I(f"v_lshlrev_b32 v{r.PF+1}, 7, v0")
        pre.I(f"v_min_u32 v{r.PF+1}, L_code_end-L1_pc-4, v{r.PF+1}")
        pre.raw(f"global_load_dword v{r.PF}, v{r.PF+1}, s[98:99]")
        k = [i for i, x in enumerate(a.ins) if x.mn == "v_lshrrev_b32"][0]
        a.ins[k:k] = pre.ins
        a.vmq.append("pf")
    PS = 64
    def piece_sgprs(p):
        dst = PS + 4*p
        a.I(f"s_add_u32 s{dst}, s39, {p}"); a.I(f"s_and_b32 s{dst}, s{dst}, 7")
        a.I(f"s_mul_i32 s{dst+3}, s{dst}, {64*2752}")
        a.I(f"s_lshl_b32 s{dst+1}, s{dst}, 19"); a.I(f"s_add_u32 s{dst+2}, s{dst+1}, {32*8192}")
        a.I(f"s_lshl_b32 s{dst}, s{dst}, 7")
    piece_sgprs(0); piece_sgprs(1)
    a.I("s_lshl_b32 s60, s38, 8"); a.I("s_lshl_b32 s61, s37, 3"); a.I("s_add_u32 s60, s60, s61"); a.I("s_add_u32 s3, s60, s36")
    a.I("s_lshl_b32 s60, s3, 10")
    a.I(f"v_lshlrev_b32 v{r.ST}, 4, v{L}")
    a.I("s_waitcnt lgkmcnt(0)")
    srd(a, 8, 40, 2048*1024); srd(a, 16, 56, 512*2752); srd(a, 12, 52, 512*8192)
    ntw = "nt " if OPT["nt_w"] else ""; ntk = "nt " if OPT["nt_kv"] else ""
    def dma_x(p, j):
        def s(): a.I(f"s_add_u32 m0, s44, {(p%2)*4096 + j*1024}")
        def v():
            sy.dma(("x", p), [("xs", p % 2)])
            a.vm(f"buffer_load_dwordx4 v{r.X0+j}, s[8:11], s{PS+4*p} offen lds", ("x", p))
        return s, v
    def dma_wq(s_):
        def s(): a.I(f"s_add_u32 m0, s45, {WQRING + (s_%NWQ)*8192}")
        def v():
            sy.dma(("wq", s_), [(WQRING + (s_%NWQ)*8192)//8192])
            a.vm(f"buffer_load_dwordx4 v{r.WQ}, s[12:15], s{PS+4*(s_//2)+1+(s_%2)} offen {ntw}lds", ("wq", s_))
        return s, v
    def dma_w1(p):
        def s(): a.I(f"s_add_u32 m0, s45, {W1RING + (p%NW1)*8192}")
        def v():
            sy.dma(("w1", p), [(W1RING + (p%NW1)*8192)//8192])
            a.vm(f"buffer_load_dwordx4 v{r.W1}, s[16:19], s{PS+4*p+3} offen {ntw}lds", ("w1", p))
        return s, v
    def dma_kv(which, i):
        base = (KRING if which == "k" else VRING) + (i % 8)*8192
        def s():
            a.I(f"s_add_u32 s62, s46, {i*8192}"); a.I(f"s_add_u32 m0, s45, {base}")
        def v():
            if base >= XRING: assert "pa_done" in sy.free
            sy.dma((which, i), [base//8192])
            a.vm(f"buffer_load_dwordx4 v{r.KD if which=='k' else r.VD}, {'s[20:23]' if which=='k' else 's[24:27]'}, s62 offen {ntk}lds", (which, i))
        return s, v
    def now(p): p[0](); p[1]()
    stamp(a, 0)
    srow = lambda: a.vm(f"buffer_load_dwordx4 {vr(U)}, v{r.ST}, s[8:11], s60 offen", "srow")
    if OPT["ord"] == 0: srow()
    for j in range(4): now(dma_x(0, j))
    now(dma_w1(0))
    if OPT["ord"] == 1: srow()
    a.I("s_or_b32 s96, s96, 1"); a.I(f"v_mov_b32 v{r.AD+2}, s96"); a.I(f"v_mov_b32 v{r.AD+1}, 0")
    a.I("s_or_b32 s61, s2, s36"); a.I("s_cselect_b64 exec, 0, 1")
    a.vm(f"global_store_dword v{r.AD+1}, v{r.AD+2}, s[42:43] sc0 sc1", "nst")
    a.I("s_mov_b64 exec, -1")
    def batch2():
        for j in range(4): now(dma_x(1, j))
        now(dma_w1(1)); now(dma_wq(0))
    if OPT["burst"]: batch2()
    if OPT["ord"] == 2: srow()
    for p in range(2, 8): piece_sgprs(p)
    srd(a, 20, 48, 32*2048*256); srd(a, 24, 50, 32*2048*256); srd(a, 32, 58, 2752); srd(a, 28, 54, WS_BYTES)
    a.I("s_and_b32 s96, s37, 1"); a.I("s_cmp_lt_u32 s37, 22"); a.I("s_cselect_b32 s96, s96, 0")
    a.I("s_lshr_b32 s60, s36, 1"); a.I("s_add_u32 s60, s60, s96"); a.I("s_cmp_eq_u32 s60, 3"); a.I("s_cselect_b32 s60, 0, s60")
    a.I("s_add_u32 s60, s60, s47"); a.I("s_lshl_b32 s60, s60, 5"); a.I("s_and_b32 s61, s36, 1"); a.I("s_lshl_b32 s61, s61, 4"); a.I("s_add_u32 s60, s60, s61")
    a.I(f"v_lshrrev_b32 v{r.AD+1}, 2, v{L}"); a.I(f"v_and_b32 v{r.AD}, 7, v{L}"); a.I(f"v_cmp_eq_u32 vcc, 0, v{r.AD}")
    a.I(f"v_cndmask_b32 v{r.AD+1}, -1, v{r.AD+1}, vcc")
    a.I(f"v_lshlrev_b32 v{r.AD}, 2, v{T+2}"); a.I(f"v_add_u32 v{r.AD}, v{r.AD}, v{T+4}")
    k1_setup2(a, r)
    a.vm(f"buffer_load_ushort v{T+7}, v{r.AD+1}, s[32:35], s60 offen", "b1")
    a.I("s_cmp_eq_u32 s96, 1"); a.I("s_cselect_b32 s60, 32, 0"); a.I("s_cselect_b32 s61, 64, 32"); a.I("s_cselect_b32 s62, 0, 64")
    a.I(f"v_xor_b32 v{r.W1B+1}, s61, v{r.W1B}"); a.I(f"v_xor_b32 v{r.W1B+2}, s62, v{r.W1B}"); a.I(f"v_mov_b32 v{T+5}, v{r.W1B}"); a.I(f"v_xor_b32 v{r.W1B}, s60, v{r.W1B}")
    for i in range(4): a.I(f"v_mov_b32 v{r.ONE+i}, 0x3f803f80")
    for k in range(1, 4): a.I(f"v_cmp_eq_u32 s[{52+2*k}:{53+2*k}], {k}, v{T+4}")
    a.I("s_lshl_b32 s60, s38, 4"); a.I("s_lshl_b32 s61, s36, 1"); a.I("s_add_u32 s60, s60, s61")
    a.I(f"s_mul_i32 s61, s60, {43*1024}"); a.I(f"s_add_u32 s61, s61, {HFR}")
    a.I(f"s_lshl_b32 s63, s60, 17"); a.I("s_lshl_b32 s62, s37, 12"); a.I("s_add_u32 s63, s63, s62"); a.I(f"s_add_u32 s63, s63, {OFR}")
    a.I("s_add_u32 s48, s47, s96"); a.I("s_lshl_b32 s48, s48, 9"); a.I("s_add_u32 s48, s48, s61"); a.I(f"s_add_u32 s49, s48, {43*1024}")
    a.I("s_movk_i32 s50, 1024"); a.I("s_cmp_eq_u32 s96, 1"); a.I(f"s_cselect_b32 s50, {-1024 + 8}, s50"); a.I("s_add_u32 s50, s50, s48"); a.I(f"s_add_u32 s51, s50, {43*1024}")
    a.I("s_cmp_ge_u32 s37, 22"); a.I("s_cselect_b32 s50, 0x40000000, s50"); a.I("s_cselect_b32 s51, 0x40000000, s51")
    a.I(f"v_lshlrev_b32 v{r.AD}, 3, v{r.AD}"); a.I(f"v_cmp_gt_u32 vcc, 4, v{T+4}"); a.I(f"v_cndmask_b32 v{r.AD}, -1, v{r.AD}, vcc")
    a.I(f"s_mul_i32 s60, s37, {176*64}"); a.I(f"s_add_u32 s60, s60, {CSW}")
    a.I("s_lshl_b32 s40, s36, 7"); a.I("s_add_u32 s40, s40, s60"); a.I(f"s_mul_i32 s61, s38, {176*8}"); a.I("s_add_u32 s40, s40, s61")
    a.I(f"s_add_u32 s41, s40, {128*8}"); a.I("s_cmp_lt_u32 s36, 3"); a.I("s_cselect_b32 s41, s41, 0x40000000")
    a.I("s_lshl_b32 s3, s3, 3"); a.I(f"s_add_u32 s3, s3, {STATS}")
    a.I("s_lshl_b32 s61, s36, 6"); a.I("s_add_u32 s32, s60, s61"); a.I(f"s_add_u32 s33, s32, 512"); a.I(f"s_add_u32 s34, s32, 1024")
    a.I(f"v_and_b32 v{T}, 7, v{L}"); a.I(f"v_mul_u32_u24 v{T+6}, {176*8}, v{T}"); a.I(f"v_lshrrev_b32 v{T+1}, 3, v{L}"); a.I(f"v_lshl_add_u32 v{T+6}, v{T+1}, 3, v{T+6}")
    a.I("s_cmp_lt_u32 s36, 6"); a.I("s_cselect_b32 s34, s34, s32")
    a.I(f"v_lshlrev_b32 v{r.AD+1}, 3, v{T+4}")
    a.I("s_lshl_b32 s35, s38, 11"); a.I("s_lshl_b32 s61, s36, 8"); a.I("s_add_u32 s35, s35, s61"); a.I(f"s_add_u32 s35, s35, {STATS}")
    a.I(f"v_lshlrev_b32 v{r.AD+2}, 6, v{T+1}"); a.I(f"v_lshrrev_b32 v{T+1}, 1, v{T}"); a.I(f"v_lshl_add_u32 v{r.AD+2}, v{T+1}, 4, v{r.AD+2}")
    a.I(f"v_and_b32 v{T}, 1, v{T}"); a.I(f"v_lshl_add_u32 v{r.AD+2}, v{T}, 2, v{r.AD+2}")
    a.I("s_lshl_b32 s61, s36, 9"); a.I(f"s_add_u32 s61, s61, {TABLE}"); a.I(f"v_add_u32 v{r.AD+2}, s61, v{r.AD+2}")
    if OPT["warm"]:
        a.I(f"v_mov_b32 v{r.PF+1}, s3"); a.I(f"v_writelane_b32 v{r.PF+1}, s40, 1"); a.I(f"v_writelane_b32 v{r.PF+1}, s41, 2")
        a.I("s_mov_b64 exec, 7")
        a.vm(f"buffer_load_dword v{r.AD+3}, v{r.PF+1}, s[28:31], 0 offen", "warm")
        a.I("s_mov_b64 exec, -1")
    if OPT["st_late"] == 0:
        a.wait(vm="srow")
        for o in stats_ops(U): a.I(o)

    NP = 8
    for s_ in range(16): sy.expect(("wq", s_), 18 if s_ < 2 else 16)
    for p in range(8): sy.expect(("w1", p), 16 if p == 0 else 12); sy.expect(("x", p), 4)
    a.I("s_lshl_b32 s60, s36, 5"); a.I(f"v_xor_b32 v{r.PF}, s60, v{r.TB}")
    a.I("s_and_b32 s60, s36, 3"); a.I("s_add_u32 s60, s60, s96"); a.I("s_cmp_ge_u32 s60, 3"); a.I("s_cselect_b32 s60, 0, s60"); a.I("s_lshl_b32 s60, s60, 5")
    a.I(f"v_xor_b32 v{U+12}, s60, v{T+5}")
    seq = []; units = []
    def unit(name, items): units.append((name, len(seq), len(seq) + len(items))); seq.extend(items)
    for s_ in range(4): unit(("F", s_), [("f", s_, t) for t in range(3)] + ([("c", s_, 1)] if s_ < 2 else []))
    for s_ in range(12): unit(("U", s_), [("q", s_, t) for t in range(8)] + ([("c", s_, 0)] if s_ < 2 else []) + [("f", s_+4, t) for t in range(3)])
    unit(("Q12",), [("a", 0, 8+t) for t in range(3)] + [("q", 12, t) for t in range(8)])
    for tp in range(4):
        unit(("TP", tp), [("q", s_, t) for s_ in (13, 14, 15) for t in (2*tp, 2*tp+1)] + [("a", 0, 2*tp), ("a", 0, 2*tp+1)])
    def chunk(it):
        k, s_, t = it
        if k == "c": k = "q" if t == 0 else "f"
        return ("wq", s_) if k == "q" else ("w1", s_//2) if k == "f" else "table"
    def reads(n):
        k, s_, t = seq[n]; b = r.POOL + (n % NP)*4
        def g(rd):
            def f():
                sy.read(chunk(seq[n]), ("f", n, rd))
                if k == "c" and t == 0: a.lds(f"ds_read_b64_tr_b16 v[{b+2*rd}:{b+2*rd+1}], v{r.PF} offset:{WQRING + (s_%NWQ)*8192 + rd*1024}", ("f", n, rd))
                elif k == "c": a.lds(f"ds_read_b64_tr_b16 v[{b+2*rd}:{b+2*rd+1}], v{U+12} offset:{(s_%2)*4096 + rd*512}", ("f", n, rd))
                elif k == "q": a.lds(f"ds_read_b64_tr_b16 v[{b+2*rd}:{b+2*rd+1}], v{r.TB+t} offset:{WQRING + (s_%NWQ)*8192 + rd*1024}", ("f", n, rd))
                elif k == "f": a.lds(f"ds_read_b64_tr_b16 v[{b+2*rd}:{b+2*rd+1}], v{r.W1B+t} offset:{((s_//2)%NW1)*8192 + (s_%2)*4096 + rd*512}", ("f", n, rd))
                else: a.lds(f"ds_read_b128 {vr(b)}, v{r.AD+3} offset:{t*1024}", ("f", n, rd))
            return f
        return [g(0), g(1)] if k != "a" else [g(1)]
    def xf(s_, rt): return r.XF + ((s_ % 8)*2 + rt)*4
    def x_read(p, e, rt):
        def f():
            a.wait(vm=("x", p))
            sy.read(("x", p), ("xf", 2*p+e, rt), private=True)
            b = xf(2*p+e, rt)
            a.lds(f"ds_read_b128 v[{b}:{b+3}], v{r.XR+e} offset:{(p%2)*4096 + rt*2048}", ("xf", 2*p+e, rt))
        return f
    def accreg(k, t, rt):
        if k == "a": k, t = ("q", t) if t < 8 else ("f", t - 8)
        return (r.ACC + (t*2 + rt)*4) if k == "q" else (r.FACC + (t*2 + rt)*4)
    if not OPT["burst"]:
        a.wait(vm=("x", 0)); batch2()
    for e in range(2):
        for rt in range(2): x_read(0, e, rt)()
    a.wait(vm=[("w1", 0)]); sy.barrier()
    stamp(a, 1)
    for n in range(lead):
        for f in reads(n): f()
    st = Stream(a)
    first = {}; ubase = {}; lab = [0]; seen_x = set()
    for (name, lo, hi) in units:
        ubase[name] = len(st.m)
        for n in range(lo, hi):
            k, s_, t = seq[n]; b = r.POOL + (n % NP)*4
            first[n] = len(st.m)
            if k == "c":
                cs = r.CSQ if t == 0 else r.CSF
                st.mfma(f"{MF} {vr(cs)}, {vr(b)}, {vr(r.ONE)}, {'0' if s_ == 0 else vr(cs)}", lg=[("f", n, 1)])
                continue
            for rt in range(2):
                d = accreg(k, t, rt); lg = None
                if rt == 0:
                    lg = [("f", n, 1)]
                    if k != "a" and s_ not in seen_x:
                        lg += [("xf", s_, 0), ("xf", s_, 1)]; seen_x.add(s_)
                bop = vr(r.BA + 4*rt) if k == "a" else vr(xf(s_, rt))
                i = st.mfma(f"{MF} {vr(d)}, {vr(b)}, {bop}, {'0' if (s_ == 0 and k != 'a') else vr(d)}", lg=lg)
    NM = len(st.m)
    guarded = {("w1", 0)}; barpos = {}; lastds = [-1]
    def uname(n):
        for (name, lo, hi) in units:
            if lo <= n < hi: return name
    for n in range(lead, len(seq)):
        g0 = first[n - lead]; rds = reads(n); c = chunk(seq[n]); single = seq[n - lead][0] == "c"
        pos = g0 if single else g0 + (2 - len(rds))
        if c not in guarded:
            nm = uname(n); idx = [u[0] for u in units].index(nm); hi = units[idx][2]
            if nm[0] == "F": hi = units[min(idx + 1, len(units) - 1)][2]
            tags = []
            for m in range(n, hi):
                cc = chunk(seq[m])
                if cc not in guarded and cc not in tags: tags.append(cc)
            def fb(tags=tags):
                a.wait(vm=[x for x in tags if x != "table"], lg=("tw" if "table" in tags else None))
                sy.barrier()
                if "table" in tags: sy.ready.add("table")
            st.put(pos, fb, "bar"); guarded |= set(tags); barpos[nm] = pos
        for k, f in enumerate(rds): st.put(pos + (0 if single else k), f, "ds")
    def U_(s_): return ("U", s_)
    nxt_unit = {units[i][0]: units[i+1][0] for i in range(len(units) - 1)}
    def bar_in(name):
        lo = ubase[name]; hi = ubase.get(nxt_unit.get(name), NM)
        c = [p for p in barpos.values() if lo <= p < hi]
        return c[-1] if c else None
    cursor = {}
    def place(name, pieces, after=None, step=3):
        g = max(cursor.get(name, ubase[name] + 1), (after + 1) if after is not None else 0)
        for pc in pieces:
            if callable(pc): st.put(g, pc, "salu"); continue
            st.put(g, pc[0], "salu"); st.put(g, pc[1], "vm"); g += step
        cursor[name] = g
    xfree = lambda p: (lambda: sy.private_free(("x", p)))
    place(("F", 0), [dma_wq(1), dma_w1(2)], step=2)
    place(("F", 1), [xfree(0)] + [dma_x(2, j) for j in range(3)], step=2)
    place(("F", 2), [dma_x(2, 3), dma_wq(2), dma_wq(3)], step=2)
    place(("F", 3), [xfree(1), dma_x(3, 0), dma_x(3, 1), dma_wq(4)], step=2)
    place(U_(0), [dma_x(3, 2), dma_x(3, 3)])
    XO = [(0, 0), (0, 1), (1, 0), (1, 1)]
    for k, (e, rt) in enumerate(XO):
        st.put(ubase[("F", 0)] + 2 + k + (k > 1)*2, x_read(1, e, rt), "x")
        st.put(ubase[U_(0)] + 6 + 2*k, x_read(2, e, rt), "x")
    for p in range(3, 8):
        for k, (e, rt) in enumerate(XO): st.put(ubase[U_(2*p - 5)] + 2 + 3*k, x_read(p, e, rt), "x")
    place(U_(1), [xfree(2)] + [dma_x(4, j) for j in range(4)])
    for p in range(3, 6): place(U_(2*p - 4), [xfree(p)] + [dma_x(p+2, j) for j in range(4)])
    for s_ in range(1, 12): place(U_(s_), [dma_wq(s_+4)], after=bar_in(U_(s_)))
    place(U_(0), [dma_w1(3)], after=bar_in(U_(0)))
    for p in range(1, 5):
        u = U_(2*p - 2 + (1 if p == 1 else 0)); place(u, [dma_w1(p+3)], after=bar_in(u))
    place(U_(11), [dma_kv("k", 0)], step=2)
    place(("Q12",), [dma_kv("k", 1), dma_kv("v", 0), dma_kv("k", 2)], step=2)
    vmput = lambda g, t, tag: st.put(g, (lambda: a.vm(t, tag)), "vm")
    if OPT["pf_kv"] >= 0:
        g = ubase[U_(OPT["pf_kv"])] + 13
        st.dense(["s_lshl_b32 s60, s38, 3", "s_add_u32 s60, s60, s36", f"v_lshlrev_b32 v{r.PF+1}, 7, v{L}", f"v_cmp_gt_u32 vcc, 4, v{L}",
                  f"s_lshl_b32 s60, s60, 9", f"v_cndmask_b32 v{r.PF+1}, -1, v{r.PF+1}, vcc", "s_add_u32 s60, s60, s46"], g)
        vmput(g + 5, f"buffer_load_dword v{r.PF}, v{r.PF+1}, s[20:23], s60 offen", "pf")
        vmput(g + 8, f"buffer_load_dword v{r.PF}, v{r.PF+1}, s[24:27], s60 offen", "pf")
    g = ubase[U_(OPT["nonce_at"])] + 13
    st.put(g - 1, f"v_mov_b32 v{r.PF+1}, 0", "valu")
    vmput(g, f"global_load_dword v{U+15}, v{r.PF+1}, s[42:43] sc0 sc1", "nonce")
    def nonce_chk():
        a.wait(vm=["nonce", "b1"])
        a.raw("L1_nchk:")
        a.I(f"v_readfirstlane_b32 s97, v{U+15}"); a.I("s_add_u32 s96, s96, 2")
        a.I("s_cmp_lg_u32 s97, 0"); a.I("s_cbranch_scc1 L1_nok")
        a.C("s_bitcmp1_b32 s96, 15"); a.C("s_cbranch_scc1 L1_nok"); a.C("s_sleep 2")
        a.raw(f"global_load_dword v{U+15}, v{r.PF+1}, s[42:43] sc0 sc1"); a.C("s_waitcnt vmcnt(0)"); a.C("s_branch L1_nchk")
        a.raw("L1_nok:")
    if OPT["st_late"]:
        st.put(ubase[U_(0)] - 1, lambda: a.wait(vm="srow"), "x")
        st.dense(stats_ops(U), ubase[U_(0)], ubase[U_(OPT["pub_at"])] - 1)
    gp = ubase[U_(OPT["pub_at"])]
    st.put(gp - 1, "s_mov_b32 s96, 0", "salu")
    st.put(gp, nonce_chk, "x")
    pops = [f"v_cmp_eq_u32 vcc, 0, v{L}", f"v_cndmask_b32 v{U+13}, -1, 0, vcc"]
    g = st.dense(pops, gp + 1)
    vmput(g, f"buffer_store_dwordx2 v[{U+14}:{U+15}], v{U+13}, s[28:31], s3 offen sc1", "pub")
    for q, (cs, sg) in enumerate(((r.CSQ, 40), (r.CSF, 41))):
        d = U + 2*q; t1 = U + 4
        ops = [f"v_cndmask_b32 v{d}, v{cs}, v{cs+1}, s[54:55]", f"v_mov_b32 v{d+1}, s97", f"v_cndmask_b32 v{d}, v{d}, v{cs+2}, s[56:57]",
               f"v_cndmask_b32 v{d}, v{d}, v{cs+3}, s[58:59]",
               f"v_cvt_pk_bf16_f32 v{t1}, v{d}, v{d}", f"v_lshlrev_b32 v{t1}, 16, v{t1}", f"v_sub_f32 v{t1}, v{d}, v{t1}",
               f"v_cvt_pk_bf16_f32 v{d}, v{d}, v{t1}"]
        g = st.dense(ops, g + 1)
        vmput(g, f"buffer_store_dwordx2 v[{d}:{d+1}], v{r.AD}, s[28:31], s{sg} offen sc1", "pub")
    st.dense([f"v_lshlrev_b32 v{r.AD+3}, 6, v{T+4}", f"v_lshl_add_u32 v{r.AD+3}, v{T+2}, 4, v{r.AD+3}", f"v_add_u32 v{r.AD+3}, {TABLE}, v{r.AD+3}"], g + 2)
    CG, SG = U, U + 12
    cl = [f"buffer_load_dwordx2 v[{CG+2*o}:{CG+2*o+1}], v{T+6}, s[28:31], s{32+o} offen sc1" for o in range(3)] + \
         [f"buffer_load_dwordx2 v[{SG+2*rt}:{SG+2*rt+1}], v{r.AD+1}, s[28:31], s35 offen offset:{128*rt} sc1" for rt in range(2)]
    g = ubase[U_(OPT["cons_at"])] + 2
    for k, t in enumerate(cl): vmput(g + OPT["cons_sp"]*k, t.replace(" sc1", "") if OPT["cons_plain"] else t, "cons")
    tg = [CG+1, CG+3, CG+5, SG+1, SG+3]
    def chk_ops(t0): return [f"v_min3_u32 v{t0}, v{tg[0]}, v{tg[1]}, v{tg[2]}", f"v_max3_u32 v{t0+1}, v{tg[0]}, v{tg[1]}, v{tg[2]}",
            f"v_min3_u32 v{t0}, v{t0}, v{tg[3]}, v{tg[4]}", f"v_max3_u32 v{t0+1}, v{t0+1}, v{tg[3]}, v{tg[4]}",
            f"v_min_u32 v{t0}, s97, v{t0}", f"v_max_u32 v{t0+1}, s97, v{t0+1}", f"v_cmp_ne_u32 vcc, v{t0}, v{t0+1}"]
    gc = ubase[U_(OPT["chk_at"])] + 1
    st.put(gc - 1, lambda: a.wait(vm="cons"), "x")
    g = st.dense(chk_ops(r.PF), gc)
    def chk_branch():
        if OPT["stamp"] and OPT["stu"] < 0: a.I("v_writelane_b32 v255, s96, 29")
        a.I("s_mov_b32 s96, 0")
        a.I("s_cbranch_vccz L1_cok")
        a.raw("L1_cretry:")
        a.C("s_sleep 2")
        for t in cl: a.raw(t)
        a.C("s_add_u32 s96, s96, 1"); a.C("s_waitcnt vmcnt(0)")
        for o in chk_ops(r.PF): a.C(o)
        a.C("s_bitcmp1_b32 s96, 14"); a.C("s_cbranch_scc1 L1_cok"); a.C("s_cbranch_vccnz L1_cretry")
        a.raw("L1_cok:")
        if OPT["stamp"] and OPT["stu"] < 0: a.I("v_writelane_b32 v255, s96, 30")
    st.put(g, chk_branch, "x")
    def tw(o):
        def f():
            assert ("x", 6) in sy.free and ("x", 7) in sy.free
            if o == 2: a.I("s_cmp_lt_u32 s36, 6"); a.I("s_cselect_b64 exec, -1, 0")
            a.lds(f"ds_write2_b32 v{r.AD+2}, v{CG+2*o}, v{T+7 if o == 2 else r.BA+3} offset0:0 offset1:2", "tw")
            if o == 2: a.I("s_mov_b64 exec, -1")
            else: a.I(f"v_add_u32 v{r.AD+2}, 4096, v{r.AD+2}")
        return f
    bops = []
    for rt in range(2):
        v = SG + 2*rt; b0 = r.BA + 4*rt
        bops += [f"v_and_b32 v{b0}, 0xffff, v{v}", f"v_lshrrev_b32 v{b0+2}, 16, v{v}", f"v_xor_b32 v{b0}, 0x8000, v{b0}", f"v_and_b32 v{v}, 0xffff0000, v{v}", f"v_rcp_f32 v{r.SC+rt}, v{v}",
                 f"v_lshl_or_b32 v{b0}, v{b0}, 16, v{b0}", f"v_mov_b32 v{b0+3}, 0", f"v_mov_b32 v{b0+1}, v{b0}",
                 f"v_mul_f32 v{r.SC+2+rt}, {f32(CSCALE)}, v{r.SC+rt}"]
    st.dense(bops, g + 1)
    tab_bar = barpos[("Q12",)]
    twbar = bar_in(U_(10))
    st.put(twbar, lambda: (sy.private_free(("x", 6)), sy.private_free(("x", 7))), "x")
    for o in range(3): st.put(twbar + 2 + 2*o, tw(o), "x")
    assert twbar + 8 < tab_bar
    def f_ops(t, rt):
        d = r.FACC + (t*2 + rt)*4
        o = [f"v_max_f32 v{d+i}, 0, v{d+i}" for i in range(4)] + [f"v_mul_f32 v{d+i}, v{r.SC+rt}, v{d+i}" for i in range(4)]
        o += [f"v_mul_f32 v{d+i}, v{d+i}, v{d+i}" for i in range(4)]
        h = (r.HR + rt*4 + 2*t) if t < 2 else (r.HR + 8 + 2*rt)
        o += [f"v_cvt_pk_bf16_f32 v{h}, v{d}, v{d+1}", f"v_cvt_pk_bf16_f32 v{h+1}, v{d+2}, v{d+3}"]
        return o
    def q_ops(tp):
        o = []
        for rt in range(2):
            q = r.QF + (rt*4 + tp)*4
            for hh in range(2):
                d = r.ACC + ((2*tp+hh)*2 + rt)*4
                o += [f"v_mul_f32 v{d+i}, v{r.SC+2+rt}, v{d+i}" for i in range(4)]
                o += [f"v_cvt_pk_bf16_f32 v{q+2*hh}, v{d}, v{d+1}", f"v_cvt_pk_bf16_f32 v{q+2*hh+1}, v{d+2}, v{d+3}"]
        for sw in ("v_permlane32_swap_b32", "v_permlane16_swap_b32"):
            for rt in range(2):
                q = r.QF + (rt*4 + tp)*4
                o += [f"{sw} v{q+i}, v{q+2+i}" for i in range(2)]
        return o
    g = ubase[("Q12",)] + 4
    work = [("F", k) for k in range(6)] + [("Q", tp) for tp in range(4)]
    pend = []
    order = [("F", 0), ("F", 1), ("F", 2), ("F", 3), ("F", 4), ("Q", 0), ("F", 5), ("Q", 1), ("Q", 2), ("Q", 3)]
    left = []
    for w in order:
        if w[0] == "F":
            t, rt = w[1] // 2, w[1] % 2
            ops = f_ops(t, rt); ready = ubase[("Q12",)] + 2*t + rt + 3
            d = r.FACC + (t*2 + rt)*4
            fin = None
        else:
            ops = q_ops(w[1]); fin = None
            ready = (ubase[("TP", w[1]+1)] + 2) if w[1] < 3 else NM
        g = max(g, ready)
        k = 0
        while k < len(ops) and g < NM and not left:
            n = 1 if is8(ops[k]) or k + 1 >= len(ops) or is8(ops[k+1]) else 2
            for o in ops[k:k+n]: st.put(g, o, "valu")
            k += n; g += 1
        if k < len(ops) or left:
            left += ops[k:] + ([("vm", fin)] if fin else [])
        elif fin:
            if g < NM: vmput(g, fin, "hst")
            else: left.append(("vm", fin))
    if OPT["stamp"]:
        for s_ in (0, 4, 8): st.put(ubase[U_(s_)], (lambda s_=s_: stamp(a, 2 + s_//4)), "x")
        st.put(ubase[("Q12",)], lambda: stamp(a, 5), "x")
        for k in range(3 if OPT["stu"] >= 0 else 0): st.put(ubase[U_(OPT["stu"] + k)], (lambda k=k: stamp(a, 13 + k)), "x")
    st.emit()
    print("PA leftover ops:", len(left), file=sys.stderr)
    a.I("s_load_dwordx2 s[94:95], s[0:1], 72")
    for o in left:
        if isinstance(o, tuple): a.vm(o[1], "hst")
        else: a.I(o)
    for t in range(8): a.I(f"v_add_u32 v{r.TB+t}, v{T+3}, v{r.TB+t}")
    a.wait(vm=[("k", 0), ("k", 1)]); a.wait_all(vm=False)
    sy.barrier(); sy.free.add("pa_done")
    stamp(a, 6)
    phase_b(a, r, sy, dma_kv, leadb)
    a.raw("L1_end:\ns_endpgm")
    slow_path(a, r)
    return a.finalize(), a

def phase_b(a, r, sy, dma_kv, leadb):
    T = r.T; NP = 8; KL, VL = OPT["pb_k"], OPT["pb_v"]
    seq = [("k", 0, j) for j in range(8)]
    for i in range(17):
        if i + 1 < 16: seq += [("k", i+1, j) for j in range(8)]
        if i >= 1: seq += [("v", i-1, j) for j in range(8)]
    for i in range(16): sy.expect(("k", i), 8); sy.expect(("v", i), 16)
    def reads(n):
        kind, i, j = seq[n]; b = r.POOL + (n % NP)*4
        if kind == "k":
            def f():
                sy.read(("k", i), ("g", n, 1))
                a.lds(f"ds_read_b128 {vr(b)}, v{r.KB + j%4} offset:{KRING + (i%8)*8192 + (j//4)*4096}", ("g", n, 1))
            return [f]
        def g(rd):
            def f():
                sy.read(("v", i), ("g", n, rd))
                a.lds(f"ds_read_b64_tr_b16 v[{b+2*rd}:{b+2*rd+1}], v{r.TB+j} offset:{(i%8)*8192 + rd*4096}", ("g", n, rd))
            return f
        return [g(0), g(1)]
    def Sreg(i, rt, kt): return r.S + (i % 2)*16 + (rt*2 + kt)*4
    def Preg(i, rt): return r.P + (i % 2)*8 + rt*4
    def E(i, k): s = r.S + (i % 2)*16 + k; return f"v_exp_f32 v{s}, v{s}"
    def A(i, k):
        s = r.S + (i % 2)*16 + k; l = r.LS + (k // 8)*2 + k % 2
        return f"v_mov_b32 v{l}, v{s}" if (i == 0 and k % 8 < 2) else f"v_add_f32 v{l}, v{l}, v{s}"
    def C(i, k): s = r.S + (i % 2)*16 + 2*k; return f"v_cvt_pk_bf16_f32 v{r.P + (i % 2)*8 + k}, v{s}, v{s+1}"
    for n in range(leadb):
        for f in reads(n): f()
    steps = [(-1, 8)] + [(i, (8 if i + 1 < 16 else 0) + (8 if i >= 1 else 0)) for i in range(17)]
    st = Stream(a)
    guarded = {("k", 0), ("k", 1)}; PBAR = OPT["pb_bar"]; n = 0
    sbase = {}
    for (i, cnt) in steps:
        sbase[i] = len(st.m)
        for fi in range(cnt):
            kind, ii, j = seq[n]; b = r.POOL + (n % NP)*4
            nn = n + leadb
            rds = reads(nn) if nn < len(seq) else []
            for rt in range(2):
                if kind == "k":
                    kt, ks = j // 4, j % 4; d = Sreg(ii, rt, kt)
                    m = st.mfma(f"{MF} {vr(d)}, {vr(b)}, {vr(r.QF + (rt*4+ks)*4)}, {'0' if ks == 0 else vr(d)}", lg=("g", n, 1) if rt == 0 else None)
                else:
                    d = r.ACC + (j*2 + rt)*4
                    m = st.mfma(f"{MF} {vr(d)}, {vr(b)}, {vr(Preg(ii, rt))}, {'0' if ii == 0 else vr(d)}", lg=("g", n, 1) if rt == 0 else None)
                k0 = 2 - len(rds)
                if rt >= k0:
                    if rt == k0 and seq[nn][:2] not in guarded:
                        k2_, i2, _ = seq[nn]; tags = []
                        if k2_ == "k":
                            for u in range(PBAR):
                                if i2 + u < 16: tags.append(("k", i2 + u))
                                if 0 <= i2 + u - 2 < 16: tags.append(("v", i2 + u - 2))
                            if i2 + PBAR >= 16: tags += [("v", x) for x in range(i2 + PBAR - 2, 16)]
                        else: tags = [("v", x) for x in range(i2, 16)]
                        def fb(tags=tags):
                            a.wait(vm=tags); sy.barrier()
                        st.put(m, fb, "bar"); guarded |= set(tags)
                    st.put(m, rds[rt - k0], "ds")
            n += 1
    sbase[17] = len(st.m)
    V = lambda g, t: st.put(g, t, "valu")
    head = [("k", x) for x in range(3, KL)] + [("v", x) for x in range(1, VL)]
    head.sort(key=lambda x: x[1] - (2 if x[0] == "k" else 0))
    for k, x in enumerate(head):
        pc = dma_kv(*x); g = sbase[-1] + 1 + 2*k
        st.put(g, pc[0], "salu"); st.put(g, pc[1], "vm")
    setup = [f"v_mov_b32 v{r.SENT+i}, -1" for i in range(4)] + [
        "s_and_b32 s60, s2, 7", "s_lshr_b32 s60, s60, 1", f"s_mul_i32 s61, s60, {43*32768}", "s_lshr_b32 s43, s2, 3", f"s_mul_i32 s43, s43, {43*1024}",
        f"v_lshlrev_b32 v{r.PF+1}, 7, v{r.L}", f"v_add_u32 v{r.PF+1}, s45, v{r.PF+1}", f"v_cmp_gt_u32 vcc, 8, v{r.L}", f"s_mov_b32 s10, {4096*1024}", f"v_cndmask_b32 v{r.PF+1}, -1, v{r.PF+1}, vcc",
        "s_lshl_b32 s42, s2, 15", "s_lshl_b32 s3, s36, 12", "s_add_u32 s42, s42, s3", f"s_add_u32 s42, s42, {PART}"]
    g = st.dense(setup, sbase[-1])
    def sel():
        a.I("s_cmp_eq_u32 s60, 3"); a.I("s_cselect_b32 s8, s6, s4"); a.I("s_cselect_b32 s9, s7, s5")
        a.I(f"s_cselect_b32 s10, {1376*1024}, s10"); a.I("s_cselect_b32 s61, 0, s61"); a.I("s_mov_b32 s11, 0x20000"); a.I("s_add_u32 s43, s43, s61")
    st.put(g, sel, "x")
    for i in range(16):
        base = sbase[i]; cnt = sbase[i+1] - base
        extra = []
        if i + KL < 16: extra.append(dma_kv("k", i + KL))
        if i + VL < 16: extra.append(dma_kv("v", i + VL))
        if cnt == 32:
            for k in range(16): V(base + 2*k, E(i, k))
            for b in range(4):
                g = base + 8*b
                if b > 0:
                    V(g + 1, A(i, 4*b-2)); V(g + 1, A(i, 4*b-1)); V(g + 3, C(i, 2*b-2)); V(g + 3, C(i, 2*b-1))
                V(g + 5, A(i, 4*b)); V(g + 5, A(i, 4*b+1))
            nb = sbase[i+1]
            V(nb + 1, A(i, 14)); V(nb + 1, A(i, 15))
            if i + 1 < 15: V(nb + 3, C(i, 6)); V(nb + 3, C(i, 7))
            else: V(base + 31, C(i, 6)); V(nb - 1, C(i, 7))
            sites = [base + 7, base + 23, base + 15, base + 31]
        else:
            ops = []
            for k in range(16):
                ops.append(E(i, k))
                if k >= 1: ops.append(A(i, k-1))
                if k >= 2 and k % 2 == 0: ops.append(C(i, (k-2)//2))
            ops += [A(i, 15), C(i, 7)]
            g0 = base + (2 if i == 0 else 2); per = -(-len(ops) // (cnt - 2))
            for k, o in enumerate(ops): V(min(g0 + k // per, base + cnt - 1), o)
            sites = [base + 3, base + 9, base + 6, base + 12]
        for k, pc in enumerate(extra):
            st.put(sites[k], pc[0], "salu"); st.put(sites[k], pc[1], "vm")
        if OPT["pf_w"] >= 0 and i >= OPT["pf_w"] and (i - OPT["pf_w"]) % OPT["pf_ws"] == 0 and (i - OPT["pf_w"]) // OPT["pf_ws"] < 6:
            st.put(sites[2], lambda: a.vm(f"buffer_load_dword v{r.PF}, v{r.PF+1}, s[8:11], s43 offen", "pf"), "vm")
            st.put(sites[3], "s_add_u32 s43, s43, 8192", "salu")
        hk = {OPT["h_at"]: 0, OPT["h_at"] + 1: 1, OPT["h2_at"]: 2, OPT["h2_at"] + 2: 3}.get(i)
        if hk is not None:
            t = f"buffer_store_dwordx4 {vr(r.HR+4*hk)}, v{r.ST}, s[28:31], s{48+hk} offen" if hk < 2 else f"buffer_store_dwordx2 v[{r.HR+4+2*hk}:{r.HR+5+2*hk}], v{r.ST}, s[28:31], s{48+hk} offen"
            st.put(sites[3] - 4, (lambda t=t: a.vm(t, "hst")), "vm")
        if i == OPT["pf_b2"]:
            def pfb2():
                a.I(f"v_lshlrev_b32 v{r.T}, 7, v{r.L}"); a.I("s_mov_b64 exec, 0xff")
                a.vm(f"global_load_dword v{r.PF}, v{r.T}, s[94:95]", "pf")
                a.I("s_mov_b64 exec, -1")
            st.put(sites[2], pfb2, "x")
        if OPT["fill_at"] <= i < OPT["fill_at"] + 4 and OPT["fill_at"] >= 0:
            k = i - OPT["fill_at"]
            st.put(sites[3], (lambda k=k: a.vm(f"buffer_store_dwordx4 {vr(r.SENT)}, v{r.ST}, s[28:31], s42 offen offset:{k*1024}", "fill")), "vm")
        if i in (4, 8, 12) and OPT["stamp"]: st.put(base, (lambda i=i: stamp(a, 6 + i//4)), "x")
    lo = [f"v_add_f32 v{r.LS}, v{r.LS}, v{r.LS+1}", f"v_add_f32 v{r.LS+2}, v{r.LS+2}, v{r.LS+3}"]
    for sw in ("v_permlane16_swap_b32", "v_permlane32_swap_b32"):
        lo += [f"v_mov_b32 v{r.LS+1}, v{r.LS}", f"v_mov_b32 v{r.LS+3}, v{r.LS+2}", f"{sw} v{r.LS}, v{r.LS+1}", f"{sw} v{r.LS+2}, v{r.LS+3}",
               f"v_add_f32 v{r.LS}, v{r.LS}, v{r.LS+1}", f"v_add_f32 v{r.LS+2}, v{r.LS+2}, v{r.LS+3}"]
    lo += [f"v_max_f32 v{T}, v{r.LS}, v{r.LS+2}", f"v_min_f32 v{T+1}, v{r.LS}, v{r.LS+2}", f"v_add_f32 v{T+5}, v{r.LS}, v{r.LS+2}",
           f"v_cmp_nle_f32 vcc, v{T}, s60", f"v_cmp_nge_f32 s[64:65], v{T+1}, s61", f"v_cmp_u_f32 s[66:67], v{T+5}, v{T+5}"]
    st.put(sbase[16], f"s_mov_b32 s60, {f32(2.0**40)}", "salu"); st.put(sbase[16], f"s_mov_b32 s61, {f32(2.0**-40)}", "salu")
    st.dense(lo, sbase[16] + 1, sbase[17])
    st.emit()
    stamp(a, 10)
    a.I("s_or_b64 vcc, vcc, s[64:65]"); a.I("s_or_b64 vcc, vcc, s[66:67]")
    a.I("s_cbranch_scc1 L1_slow" if not OPT["force_slow"] else "s_branch L1_slow")
    a.raw("L1_norm:")
    for rt in range(2): a.I(f"v_rcp_f32 v{T+rt}, v{r.LS+rt*2}")
    for rt in range(2):
        for ks in range(4):
            o = r.QF + (rt*4 + ks)*4
            for hh in range(2):
                d = r.ACC + ((2*ks+hh)*2 + rt)*4
                for i in range(4): a.I(f"v_mul_f32 v{d+i}, v{T+rt}, v{d+i}")
                a.I(f"v_cvt_pk_bf16_f32 v{o+2*hh}, v{d}, v{d+1}")
                a.I(f"v_cvt_pk_bf16_f32 v{o+2*hh+1}, v{d+2}, v{d+3}")
            if ks == 0 and rt == 1: a.I(f"s_add_u32 s63, s63, {128*1024}")
            a.vm(f"buffer_store_dwordx4 {vr(o)}, v{r.ST}, s[28:31], s63 offen offset:{ks*1024}")
    stamp(a, 11)
    if OPT["stamp"]: a.wait_all()
    stamp(a, 12); stamp_store(a, 1, 28)

def slow_path(a, r):
    T = r.T; KA, VA, VA2, M, NEG = T+5, T+6, T+7, r.LS, r.SENT
    NEG = r.BA; S = r.S; P = r.P
    a.raw("L1_slow:")
    a.I("s_waitcnt vmcnt(0) lgkmcnt(0)"); a.I("s_nop 15")
    a.I(f"v_lshlrev_b32 v{KA}, 8, v{T+4}"); a.I(f"v_lshl_add_u32 v{KA}, v{T+2}, 4, v{KA}")
    a.I(f"v_add_u32 v{T}, 4096, v{KA}")
    a.I(f"v_lshlrev_b32 v{VA}, 10, v{T+2}"); a.I(f"v_lshl_add_u32 v{VA}, v{T+4}, 1, v{VA}")
    a.I(f"v_add_u32 v{VA2}, 4096, v{VA}")
    def qk(cinit):
        for j in range(8):
            a.raw(f"buffer_load_dwordx4 {vr(r.POOL+4*j)}, v{KA if j < 4 else T}, s[20:23], s62 offen offset:{(j%4)*64}")
        a.I("s_waitcnt vmcnt(0)")
        for j in range(8):
            kt, ks = j // 4, j % 4
            for rt in range(2):
                d = S + (rt*2 + kt)*4
                c = vr(d) if ks else (vr(NEG + 4*rt) if cinit else "0")
                a.I(f"{MF} {vr(d)}, {vr(r.POOL+4*j)}, {vr(r.QF + (rt*4+ks)*4)}, {c}")
        a.I("s_nop 7")
    for rt in range(2): a.I(f"v_mov_b32 v{M+2*rt}, 0xff800000")
    a.I("s_mov_b32 s62, s46"); a.I("s_mov_b32 s60, 16")
    a.raw("L1_s1:")
    qk(False)
    for rt in range(2):
        for k in range(0, 8, 2): a.I(f"v_max3_f32 v{M+2*rt}, v{M+2*rt}, v{S+8*rt+k}, v{S+8*rt+k+1}")
    a.I("s_add_u32 s62, s62, 8192"); a.I("s_sub_u32 s60, s60, 1"); a.I("s_cmp_lg_u32 s60, 0"); a.I("s_cbranch_scc1 L1_s1")
    for sw in ("v_permlane16_swap_b32", "v_permlane32_swap_b32"):
        for rt in range(2):
            a.I(f"v_mov_b32 v{M+2*rt+1}, v{M+2*rt}"); a.I(f"{sw} v{M+2*rt}, v{M+2*rt+1}"); a.I(f"v_max_f32 v{M+2*rt}, v{M+2*rt}, v{M+2*rt+1}")
    for rt in range(2):
        for i in range(4): a.I(f"v_sub_f32 v{NEG+4*rt+i}, 0, v{M+2*rt}")
    for i in range(64): a.I(f"v_mov_b32 v{r.ACC+i}, 0")
    for rt in range(2): a.I(f"v_mov_b32 v{M+2*rt}, 0")
    a.I("s_mov_b32 s62, s46"); a.I("s_mov_b32 s60, 16")
    a.raw("L1_s2:")
    qk(True)
    for k in range(16): a.I(f"v_exp_f32 v{S+k}, v{S+k}")
    for k in range(16): a.I(f"v_add_f32 v{M+2*(k//8)}, v{M+2*(k//8)}, v{S+k}")
    for k in range(8): a.I(f"v_cvt_pk_bf16_f32 v{P+k}, v{S+2*k}, v{S+2*k+1}")
    for t0 in range(0, 8, 2):
        for t in (t0, t0 + 1):
            for j in range(8):
                a.raw(f"buffer_load_ushort v{S+16+8*(t-t0)+j}, v{VA if j < 4 else VA2}, s[24:27], s62 offen offset:{(j%4)*256 + t*32}")
        a.I("s_waitcnt vmcnt(0)")
        for t in (t0, t0 + 1):
            for j in range(4): a.I(f"v_lshl_or_b32 v{r.POOL+4*t+j}, v{S+16+8*(t-t0)+2*j+1}, 16, v{S+16+8*(t-t0)+2*j}")
    for t in range(8):
        for rt in range(2):
            d = r.ACC + (t*2 + rt)*4
            a.I(f"{MF} {vr(d)}, {vr(r.POOL+4*t)}, {vr(P+4*rt)}, {vr(d)}")
    a.I("s_add_u32 s62, s62, 8192"); a.I("s_sub_u32 s60, s60, 1"); a.I("s_cmp_lg_u32 s60, 0"); a.I("s_nop 7"); a.I("s_cbranch_scc1 L1_s2")
    for sw in ("v_permlane16_swap_b32", "v_permlane32_swap_b32"):
        for rt in range(2):
            a.I(f"v_mov_b32 v{M+2*rt+1}, v{M+2*rt}"); a.I(f"{sw} v{M+2*rt}, v{M+2*rt+1}"); a.I(f"v_add_f32 v{M+2*rt}, v{M+2*rt}, v{M+2*rt+1}")
    a.I("s_nop 7")
    a.I("s_branch L1_norm")

def build():
    o = """; generated by gen/kern4.py
; @launch kernel=attn_kernel grid=(256,1,1) block=(512,1,1) lds=163840
; @launch kernel=gemm_kernel grid=(256,1,1) block=(512,1,1) lds=131072
.amdgcn_target "amdgcn-amd-amdhsa--gfx950"
.text
"""
    t, a1 = k1(); o += khead("attn_kernel") + t
    t, a2 = kern2.k2(); o += khead("gemm_kernel") + t + "L_code_end:\n"
    o += '.section .rodata,"a"\n' + kd("attn_kernel") + kd("gemm_kernel")
    print("nops added:", a1.nops_added, a2.nops_added, file=sys.stderr)
    return o
if __name__ == "__main__":
    for x in sys.argv[2:]:
        k, v = x.split("="); assert k in OPT, k; OPT[k] = int(v)
    open(sys.argv[1], "w").write(build())
```
